```python
import torch

def _softmax(x, axis=-1):
    return torch.softmax(x, dim=axis)
def _gelu(x):
    return torch.nn.functional.gelu(x, approximate="tanh")
def _silu(x):
    return torch.nn.functional.silu(x)
def _sigmoid(x):
    return torch.sigmoid(x)
def _layernorm(x, axis=-1, eps=1e-5):
    m = x.mean(dim=axis, keepdim=True)
    v = x.var(dim=axis, keepdim=True, unbiased=False)
    return (x - m) / torch.sqrt(v + eps)
def _scatter_add(tgt, idx, src, axis=0):
    return tgt.clone().index_add_(axis, idx, src)
def _segment_sum(src, seg, n):
    out = torch.zeros((n,) + src.shape[1:], dtype=src.dtype)
    return out.index_add_(0, seg, src)
def _pad(x, pw):
    flat = tuple(v for pair in reversed(pw) for v in pair)
    return torch.nn.functional.pad(x, flat)

kernel_name = 'parallel_sum__ssm_conv_s4d__dense_activation_gelu__prompt'

def setup_inputs():

    _w = (lambda a: (lambda t: t.to(torch.bfloat16) if t.is_floating_point() else t)(torch.as_tensor(a)))
    def _A_setup():
        Bsz, L, D, N = 1, 2048, 512, 128
        return {
            "u": _w((lambda *s: torch.randn(*s, dtype=torch.bfloat16) * 0.05)(Bsz, L, D)),
            "log_A_real": _w((lambda *s: torch.randn(*s, dtype=torch.bfloat16) * 12.8)(D, N) * 0.5),
            "A_imag": _w((lambda *s: torch.randn(*s, dtype=torch.bfloat16) * 0.05)(D, N) * 3.14),
            "C_real": _w((lambda *s: torch.randn(*s, dtype=torch.bfloat16) * 0.1)(D, N) / N ** 0.5),
            "C_imag": _w((lambda *s: torch.randn(*s, dtype=torch.bfloat16) * 0.2)(D, N) / N ** 0.5),
            "log_dt": _w((lambda *s: torch.randn(*s, dtype=torch.bfloat16) * 0.05)(D) * 0.5 - 4.0),
            "D_skip": _w((lambda *s: torch.randn(*s, dtype=torch.bfloat16) * 0.05)(D)),
        }
    _A_in = _A_setup()

    def _B_setup():
        B, S, D, F = 1, 2048, 512, 1792
        return {
            "x": _w((lambda *s: torch.randn(*s, dtype=torch.bfloat16) * 0.05)(B, S, D)),
            "w1": _w((lambda *s: torch.randn(*s, dtype=torch.bfloat16) * 0.8)(D, F) * (D ** -0.5)),
            "b1": _w((lambda *s: torch.randn(*s, dtype=torch.bfloat16) * 12.8)(F) * 0.01),
            "w2": _w((lambda *s: torch.randn(*s, dtype=torch.bfloat16) * 0.8)(F, D) * (F ** -0.5)),
            "b2": _w((lambda *s: torch.randn(*s, dtype=torch.bfloat16) * 12.8)(D) * 0.01),
        }
    _B_in = _B_setup()

    return {
        "A_u": _A_in["u"],
        "A_log_A_real": _A_in["log_A_real"],
        "A_A_imag": _A_in["A_imag"],
        "A_C_real": _A_in["C_real"],
        "A_C_imag": _A_in["C_imag"],
        "A_log_dt": _A_in["log_dt"],
        "A_D_skip": _A_in["D_skip"],
        "B_x": _B_in["x"],
        "B_w1": _B_in["w1"],
        "B_b1": _B_in["b1"],
        "B_w2": _B_in["w2"],
        "B_b2": _B_in["b2"],
    }

def reference(A_u, A_log_A_real, A_A_imag, A_C_real, A_C_imag, A_log_dt, A_D_skip, B_x, B_w1, B_b1, B_w2, B_b2):
    def _A_ref(u, log_A_real, A_imag, C_real, C_imag, log_dt, D_skip):
        L = u.shape[1]
        dt = torch.exp(log_dt)
        A = -torch.exp(log_A_real) + 1j * A_imag
        C = (C_real + 1j * C_imag) * dt[:, None]
        pos = (lambda x, dt: x.to(dt))(torch.arange(L), log_dt.dtype)
        P = torch.exp((A * dt[:, None])[:, :, None] * pos[None, None, :])
        K = 2.0 * torch.einsum("dn,dnl->dl", C, P).real
        L2 = 2 * L
        u_t = (lambda x, *d: x.permute(*d))(u, 0, 2, 1)
        Kf = (lambda x, *a, **k: torch.fft.rfft(x.float(), *a, **k))(K, L2)
        Uf = (lambda x, *a, **k: torch.fft.rfft(x.float(), *a, **k))(u_t, L2)
        y = (lambda x, *a, **k: torch.fft.irfft(x, *a, **k).to(torch.bfloat16))(Uf * Kf[None, :, :], L2)[:, :, :L]
        y = (lambda x, *d: x.permute(*d))(y, 0, 2, 1)
        return y + u * D_skip[None, None, :]

    def _B_ref(x, w1, b1, w2, b2):
        h = torch.einsum("bsd,df->bsf", x, w1) + b1
        h = _gelu(h)
        return torch.einsum("bsf,fd->bsd", h, w2) + b2

    x = A_u
    xn = _layernorm(x, axis=-1)
    return x + _A_ref(xn, A_log_A_real, A_A_imag, A_C_real, A_C_imag, A_log_dt, A_D_skip) + _B_ref(xn, B_w1, B_b1, B_w2, B_b2)
```

```python
class Asm:
    def __init__(self):
        self.lines = []
        self.uid = 0
    def __call__(self, s):
        for ln in s.strip("\n").split("\n"):
            self.lines.append("    " + ln.strip() if ln.strip() and not ln.strip().endswith(":") else ln.strip())
    def label(self, name):
        self.lines.append(name + ":")
    def newlabel(self, p="L"):
        self.uid += 1
        return f"{p}_{self.uid}"
    def comment(self, s):
        self.lines.append("    ; " + s)
    def text(self):
        return "\n".join(self.lines) + "\n"

def vr(lo, n=1):
    return f"v{lo}" if n == 1 else f"v[{lo}:{lo+n-1}]"
def sr(lo, n=1):
    return f"s{lo}" if n == 1 else f"s[{lo}:{lo+n-1}]"
def ar(lo, n=1):
    return f"a{lo}" if n == 1 else f"a[{lo}:{lo+n-1}]"
```

```python
import sys
sys.path.insert(0, "dev")
from asmlib import Asm, vr, sr, ar

NAME = "parallel_sum__ssm_conv_s4d__dense_activation_gelu__prompt"
WS_XN   = 0x000000
WS_XNT  = 0x200000
WS_KR   = 0x400000; KR_STRIDE = 4224
WS_W1T  = 0x680000
WS_W2T  = 0x880000
WS_H    = 0xA80000
WS_YAT  = 0x1200000

KA_U, KA_LOGA, KA_AIM, KA_CR, KA_CI, KA_LOGDT, KA_DSKIP, KA_X, KA_W1, KA_B1, KA_W2, KA_B2, KA_OUT, KA_DBG, KA_WS = [8*i for i in range(15)]

def srd(a, s, ptr, size, add=0):
    if add:
        a(f"s_add_u32 s{s}, s{ptr}, {add}")
        a(f"s_addc_u32 s{s+1}, s{ptr+1}, 0")
    else:
        a(f"s_mov_b32 s{s}, s{ptr}")
        a(f"s_mov_b32 s{s+1}, s{ptr+1}")
    a(f"s_mov_b32 s{s+2}, {size}")
    a(f"s_mov_b32 s{s+3}, 0x00020000")

def bf16r(a, d, s):
    a(f"v_cvt_pk_bf16_f32 v{d}, v{s}, v{s}")
    a(f"v_lshlrev_b32 v{d}, 16, v{d}")

def transpose_out(a, lds_row_stride, v_ldsaddr, srd_dst, v_dst, dst_row_stride, vt=32):
    a("s_mov_b32 s44, 0x05040100")
    a("s_mov_b32 s45, 0x07060302")
    for j in range(16):
        a(f"ds_read_b32 v{vt+j}, v{v_ldsaddr} offset:{j*lds_row_stride}")
    a("s_waitcnt lgkmcnt(0)")
    for j in range(8):
        a(f"v_perm_b32 v{vt+16+j}, v{vt+2*j+1}, v{vt+2*j}, s44")
        a(f"v_perm_b32 v{vt+24+j}, v{vt+2*j+1}, v{vt+2*j}, s45")
    a(f"buffer_store_dwordx4 v[{vt+16}:{vt+19}], v{v_dst}, s[{srd_dst}:{srd_dst+3}], 0 offen")
    a(f"buffer_store_dwordx4 v[{vt+20}:{vt+23}], v{v_dst}, s[{srd_dst}:{srd_dst+3}], 0 offen offset:16")
    a(f"v_add_u32 v{v_dst}, {dst_row_stride}, v{v_dst}")
    a(f"buffer_store_dwordx4 v[{vt+24}:{vt+27}], v{v_dst}, s[{srd_dst}:{srd_dst+3}], 0 offen")
    a(f"buffer_store_dwordx4 v[{vt+28}:{vt+31}], v{v_dst}, s[{srd_dst}:{srd_dst+3}], 0 offen offset:16")

def wave_reduce4(a, regs, tmp):
    for x in (1, 2, 4, 8, 16):
        for r, t in zip(regs, tmp):
            a(f"ds_swizzle_b32 v{t}, v{r} offset:{(x << 10) | 0x1f}")
        a("s_waitcnt lgkmcnt(0)")
        for r, t in zip(regs, tmp):
            a(f"v_add_f32 v{r}, v{r}, v{t}")
    a("s_nop 1")
    for i, r in enumerate(regs):
        a(f"v_readlane_b32 s{60+2*i}, v{r}, 0")
        a(f"v_readlane_b32 s{61+2*i}, v{r}, 32")
    a("s_nop 1")
    for i, r in enumerate(regs):
        a(f"v_mov_b32 v{r}, s{60+2*i}")
        a(f"v_add_f32 v{r}, s{61+2*i}, v{r}")

def gen_prep(a):
    K = "prep_kernel"
    a(f".globl {K}\n.p2align 8\n.type {K},@function")
    a.label(K)
    a("s_load_dwordx2 s[4:5], s[0:1], %d" % KA_WS)
    a("s_cmp_lt_u32 s2, 512")
    a("s_cbranch_scc1 L_kgen")
    a("s_cmp_lt_u32 s2, 640")
    a("s_cbranch_scc1 L_ln")
    a("s_cmp_lt_u32 s2, 768")
    a("s_cbranch_scc1 L_w1")
    a("s_cmp_lt_u32 s2, 880")
    a("s_cbranch_scc1 L_w2")
    a("s_endpgm")
    a.label("L_ln")
    a("s_load_dwordx2 s[6:7], s[0:1], %d" % KA_U)
    a("s_sub_u32 s3, s2, 512")
    a("v_and_b32 v1, 63, v0")
    a("v_lshrrev_b32 v2, 6, v0")
    a("s_lshl_b32 s20, s3, 14")
    a("v_lshlrev_b32 v3, 12, v2")
    a("v_lshl_add_u32 v3, v1, 4, v3")
    a("v_add_u32 v4, s20, v3")
    a("s_waitcnt lgkmcnt(0)")
    srd(a, 8, 6, 0x200000)
    srd(a, 12, 4, 0x200000, WS_XN)
    srd(a, 16, 4, 0x200000, WS_XNT)
    for j in range(4):
        a(f"buffer_load_dwordx4 v[{8+4*j}:{11+4*j}], v4, s[8:11], 0 offen offset:{1024*j}")
    a("s_waitcnt vmcnt(0)")
    for j in range(4):
        for e in range(4):
            a(f"v_lshlrev_b32 v{32+8*j+2*e}, 16, v{8+4*j+e}")
            a(f"v_and_b32 v{33+8*j+2*e}, 0xffff0000, v{8+4*j+e}")
    for j in range(4):
        a(f"v_add_f32 v{64+j}, v{32+8*j}, v{33+8*j}")
        for e in range(2, 8):
            a(f"v_add_f32 v{64+j}, v{64+j}, v{32+8*j+e}")
    wave_reduce4(a, [64, 65, 66, 67], [68, 69, 70, 71])
    for j in range(4):
        a(f"v_mul_f32 v{64+j}, 0x3b000000, v{64+j}")
    for j in range(4):
        for e in range(8):
            a(f"v_sub_f32 v76, v{32+8*j+e}, v{64+j}")
            if e == 0:
                a(f"v_mul_f32 v{72+j}, v76, v76")
            else:
                a(f"v_fmac_f32 v{72+j}, v76, v76")
    wave_reduce4(a, [72, 73, 74, 75], [68, 69, 70, 71])
    for j in range(4):
        a(f"v_mul_f32 v{72+j}, 0x3b000000, v{72+j}")
        bf16r(a, 64+j, 64+j)
        bf16r(a, 72+j, 72+j)
        a(f"v_add_f32 v{72+j}, 0x3727c5ac, v{72+j}")
        bf16r(a, 72+j, 72+j)
        a(f"v_sqrt_f32 v{72+j}, v{72+j}")
        a("s_nop 0")
        bf16r(a, 72+j, 72+j)
        a(f"v_rcp_f32 v{76+j}, v{72+j}")
    a("s_nop 0")
    for j in range(4):
        for e in range(8):
            r = 32+8*j+e
            a(f"v_sub_f32 v{r}, v{r}, v{64+j}")
            bf16r(a, r, r)
            a(f"v_mul_f32 v80, v{r}, v{76+j}")
            a(f"v_fma_f32 v81, -v80, v{72+j}, v{r}")
            a(f"v_fma_f32 v{r}, v81, v{76+j}, v80")
        for e in range(4):
            a(f"v_cvt_pk_bf16_f32 v{8+4*j+e}, v{32+8*j+2*e}, v{33+8*j+2*e}")
    for j in range(4):
        a(f"buffer_store_dwordx4 v[{8+4*j}:{11+4*j}], v4, s[12:15], 0 offen offset:{1024*j}")
        a(f"ds_write_b128 v3, v[{8+4*j}:{11+4*j}] offset:{1024*j}")
    a("s_waitcnt lgkmcnt(0)")
    a("s_barrier")
    a("v_lshlrev_b32 v5, 2, v0")
    a("v_lshlrev_b32 v6, 13, v0")
    a("s_lshl_b32 s20, s3, 5")
    a("v_add_u32 v6, s20, v6")
    transpose_out(a, 1024, 5, 16, 6, 4096)
    a("s_endpgm")
    a.label("L_w1")
    a("s_load_dwordx2 s[6:7], s[0:1], %d" % KA_W1)
    a("s_sub_u32 s3, s2, 640")
    a("s_and_b32 s21, s3, 7")
    a("s_lshr_b32 s20, s3, 3")
    a("s_cmp_eq_u32 s21, 7")
    a("s_cbranch_scc1 L_end_prep")
    a("s_lshl_b32 s20, s20, 5")
    a("s_lshl_b32 s21, s21, 8")
    a("s_movk_i32 s22, 3584")
    a("s_movk_i32 s23, 1024")
    a("s_waitcnt lgkmcnt(0)")
    srd(a, 8, 6, 1835008)
    srd(a, 12, 4, 1835008, WS_W1T)
    a("s_branch L_wt")
    a.label("L_w2")
    a("s_load_dwordx2 s[6:7], s[0:1], %d" % KA_W2)
    a("s_sub_u32 s3, s2, 768")
    a("s_and_b32 s21, s3, 1")
    a("s_lshr_b32 s20, s3, 1")
    a("s_lshl_b32 s20, s20, 5")
    a("s_lshl_b32 s21, s21, 8")
    a("s_movk_i32 s22, 1024")
    a("s_movk_i32 s23, 3584")
    a("s_waitcnt lgkmcnt(0)")
    srd(a, 8, 6, 1835008)
    srd(a, 12, 4, 1835008, WS_W2T)
    a.label("L_wt")
    a("v_lshrrev_b32 v1, 5, v0")
    a("v_and_b32 v2, 31, v0")
    a("v_lshlrev_b32 v2, 4, v2")
    a("v_add_u32 v3, s20, v1")
    a("v_mul_lo_u32 v3, v3, s22")
    a("s_lshl_b32 s24, s21, 1")
    a("v_add3_u32 v3, v3, v2, s24")
    a("s_lshl_b32 s25, s22, 3")
    a("v_lshl_add_u32 v4, v1, 9, v2")
    for i in range(4):
        a(f"buffer_load_dwordx4 v[{8+4*i}:{11+4*i}], v3, s[8:11], 0 offen")
        if i < 3:
            a("v_add_u32 v3, s25, v3")
    a("s_waitcnt vmcnt(0)")
    for i in range(4):
        a(f"ds_write_b128 v4, v[{8+4*i}:{11+4*i}] offset:{4096*i}")
    a("s_waitcnt lgkmcnt(0)")
    a("s_barrier")
    a("v_and_b32 v1, 127, v0")
    a("v_lshrrev_b32 v2, 7, v0")
    a("v_lshlrev_b32 v5, 13, v2")
    a("v_lshl_add_u32 v5, v1, 2, v5")
    a("v_lshl_add_u32 v6, v1, 1, s21")
    a("v_mul_lo_u32 v6, v6, s23")
    a("s_lshl_b32 s24, s20, 1")
    a("v_lshlrev_b32 v7, 5, v2")
    a("v_add3_u32 v6, v6, v7, s24")
    a("s_mov_b32 s44, 0x05040100")
    a("s_mov_b32 s45, 0x07060302")
    vt = 32
    for j in range(16):
        a(f"ds_read_b32 v{vt+j}, v5 offset:{j*512}")
    a("s_waitcnt lgkmcnt(0)")
    for j in range(8):
        a(f"v_perm_b32 v{vt+16+j}, v{vt+2*j+1}, v{vt+2*j}, s44")
        a(f"v_perm_b32 v{vt+24+j}, v{vt+2*j+1}, v{vt+2*j}, s45")
    a(f"buffer_store_dwordx4 v[{vt+16}:{vt+19}], v6, s[12:15], 0 offen")
    a(f"buffer_store_dwordx4 v[{vt+20}:{vt+23}], v6, s[12:15], 0 offen offset:16")
    a(f"v_add_u32 v6, s23, v6")
    a(f"buffer_store_dwordx4 v[{vt+24}:{vt+27}], v6, s[12:15], 0 offen")
    a(f"buffer_store_dwordx4 v[{vt+28}:{vt+31}], v6, s[12:15], 0 offen offset:16")
    a.label("L_end_prep")
    a("s_endpgm")
    a.label("L_kgen")
    a("s_load_dwordx4 s[8:11], s[0:1], %d" % KA_LOGA)
    a("s_load_dwordx4 s[12:15], s[0:1], %d" % KA_CR)
    a("s_load_dwordx2 s[16:17], s[0:1], %d" % KA_LOGDT)
    a("v_lshrrev_b32 v2, 6, v0")
    a("v_and_b32 v1, 63, v0")
    a("s_nop 0")
    a("v_readfirstlane_b32 s3, v2")
    a("s_waitcnt lgkmcnt(0)")
    a("s_lshr_b32 s18, s2, 1")
    a("s_lshl_b32 s18, s18, 2")
    a("s_load_dword s19, s[16:17], s18")
    srd(a, 20, 8, 131072)
    srd(a, 24, 10, 131072)
    srd(a, 28, 12, 131072)
    srd(a, 32, 14, 131072)
    srd(a, 36, 4, 512*KR_STRIDE, WS_KR)
    a("s_cmp_ge_u32 s3, 2")
    a("s_cbranch_scc1 L_kg_main")
    a("s_lshl_b32 s40, s2, 8")
    a("v_lshl_add_u32 v3, v0, 1, s40")
    a("buffer_load_ushort v4, v3, s[20:23], 0 offen")
    a("buffer_load_ushort v5, v3, s[24:27], 0 offen")
    a("buffer_load_ushort v6, v3, s[28:31], 0 offen")
    a("buffer_load_ushort v7, v3, s[32:35], 0 offen")
    a("s_waitcnt lgkmcnt(0)")
    a("s_and_b32 s41, s2, 1")
    a("s_lshl_b32 s41, s41, 4")
    a("s_lshr_b32 s19, s19, s41")
    a("s_lshl_b32 s19, s19, 16")
    a("v_mov_b32 v8, s19")
    a("v_mul_f32 v8, 0x3fb8aa3b, v8")
    a("v_exp_f32 v8, v8")
    a("s_nop 0")
    bf16r(a, 8, 8)
    a("s_waitcnt vmcnt(0)")
    for r in (4, 5, 6, 7):
        a(f"v_lshlrev_b32 v{r}, 16, v{r}")
    a("v_mul_f32 v4, 0x3fb8aa3b, v4")
    a("v_exp_f32 v4, v4")
    a("s_nop 0")
    bf16r(a, 4, 4)
    a("v_mul_f32 v4, v4, v8")
    a("v_mul_f32 v12, 0xbfb8aa3b, v4")
    a("v_mul_f32 v5, v5, v8")
    a("v_mul_f32 v13, 0x3e22f983, v5")
    a("v_mul_f32 v6, v6, v8")
    a("v_mul_f32 v7, v7, v8")
    a("v_add_f32 v14, v6, v6")
    a("v_mul_f32 v15, -2.0, v7")
    a("v_mov_b32 v16, v12")
    a("v_mov_b32 v17, v13")
    a("v_mov_b32 v18, v15")
    a("v_mul_f32 v19, -2.0, v6")
    a("v_lshlrev_b32 v3, 4, v0")
    a("ds_write_b128 v3, v[12:15]")
    a("ds_write_b128 v3, v[16:19] offset:2048")
    a.label("L_kg_main")
    a("s_waitcnt lgkmcnt(0)")
    a("s_barrier")
    a("v_and_b32 v3, 15, v1")
    a("v_lshrrev_b32 v4, 4, v1")
    a("v_lshlrev_b32 v5, s3, v3")
    a("v_cvt_f32_u32 v20, v5")
    a("v_lshlrev_b32 v5, 4, v5")
    a("s_lshl_b32 s40, 128, s3")
    a("s_cmp_eq_u32 s3, 0")
    a("s_cselect_b32 s40, 0, s40")
    a("v_add_u32 v5, s40, v5")
    a("v_cvt_f32_u32 v21, v5")
    a("v_lshrrev_b32 v6, 1, v4")
    a("v_cvt_f32_u32 v22, v6")
    a("v_mul_f32 v22, 0xbe800000, v22")
    a("v_and_b32 v7, 1, v4")
    a("v_lshlrev_b32 v7, 10, v7")
    a("v_lshl_add_u32 v23, v6, 11, v7")
    for r in range(4):
        a(f"v_mov_b32 v{40+r}, 0")
    for t in range(64):
        p = 24 + 4*(t & 1)
        b = 44 + 8*(t & 1)
        if t == 0:
            a(f"ds_read_b128 v[{p}:{p+3}], v23 offset:0")
        if t < 63:
            pn = 24 + 4*((t+1) & 1)
            a(f"ds_read_b128 v[{pn}:{pn+3}], v23 offset:{16*(t+1)}")
            a("s_waitcnt lgkmcnt(1)")
        else:
            a("s_waitcnt lgkmcnt(0)")
        a(f"v_mul_f32 v{b}, v{p}, v21")
        a(f"v_mul_f32 v{b+1}, v{p+1}, v21")
        a(f"v_mul_f32 v{b+4}, v{p}, v20")
        a(f"v_fma_f32 v{b+5}, v{p+1}, v20, v22")
        a(f"v_exp_f32 v{b}, v{b}")
        a(f"v_fract_f32 v{b+1}, v{b+1}")
        a(f"v_exp_f32 v{b+4}, v{b+4}")
        a(f"v_fract_f32 v{b+5}, v{b+5}")
        a(f"v_cos_f32 v{b+2}, v{b+1}")
        a(f"v_sin_f32 v{b+3}, v{b+1}")
        a(f"v_cos_f32 v{b+5}, v{b+5}")
        a("s_nop 0")
        a(f"v_mul_f32 v{b+2}, v{p+2}, v{b+2}")
        a(f"v_fmac_f32 v{b+2}, v{p+3}, v{b+3}")
        a(f"v_mul_f32 v{b+4}, v{b+4}, v{b+5}")
        a(f"v_mul_f32 v{b+2}, v{b}, v{b+2}")
        a("s_nop 1")
        a(f"v_mfma_f32_16x16x4_f32 v[40:43], v{b+2}, v{b+4}, v[40:43]")
    a("s_nop 15")
    a("v_lshlrev_b32 v5, 8, v4")
    a("v_lshl_add_u32 v5, v3, 2, v5")
    a("s_lshl_b32 s40, s3, 10")
    a("v_add_u32 v5, s40, v5")
    for r in range(4):
        a(f"ds_write_b32 v5, v{40+r} offset:{4096+64*r}")
    a("s_waitcnt lgkmcnt(0)")
    a("s_barrier")
    a("v_lshlrev_b32 v3, 3, v0")
    a("v_sub_u32 v3, 2047, v3")
    a("v_mov_b32 v4, 0")
    for thr in (256, 512, 1024):
        a(f"v_cmp_le_u32 vcc, {thr}, v3")
        a("s_nop 1")
        a("v_addc_co_u32 v4, vcc, 0, v4, vcc")
    a("v_lshlrev_b32 v5, v4, 1")
    a("v_lshrrev_b32 v5, 1, v5")
    a("v_cmp_ne_u32 vcc, 0, v4")
    a("s_nop 1")
    a("v_cndmask_b32 v6, 0, 1, vcc")
    a("v_sub_u32 v5, v5, v6")
    a("v_lshlrev_b32 v7, 7, v6")
    a("v_lshlrev_b32 v8, 8, v4")
    a("v_sub_u32 v8, v8, v7")
    for e in range(8):
        a(f"v_subrev_u32 v9, {e}, v3")
        a("v_lshrrev_b32 v10, v4, v9")
        a("v_and_b32 v10, v10, v6")
        a("v_add3_u32 v10, v10, v9, v5")
        a("v_lshrrev_b32 v10, v4, v10")
        a("v_add_u32 v10, v10, v8")
        a("v_lshlrev_b32 v10, 2, v10")
        a(f"ds_read_b32 v{24+e}, v10 offset:4096")
    a("s_waitcnt lgkmcnt(0)")
    for e in range(4):
        a(f"v_cvt_pk_bf16_f32 v{32+e}, v{24+2*e}, v{25+2*e}")
    a(f"s_mul_i32 s40, s2, {KR_STRIDE}")
    a("v_lshl_add_u32 v5, v0, 4, s40")
    a("buffer_store_dwordx4 v[32:35], v5, s[36:39], 0 offen")
    a("v_cmp_gt_u32 vcc, 8, v0")
    a("s_and_saveexec_b64 s[42:43], vcc")
    a("s_cbranch_execz L_kg_end")
    for e in range(4):
        a(f"v_mov_b32 v{36+e}, 0")
    a("v_add_u32 v5, 4096, v5")
    a("buffer_store_dwordx4 v[36:39], v5, s[36:39], 0 offen")
    a.label("L_kg_end")
    a("s_endpgm")


def gemm_core(a, tag, RA, RB, nsteps, srdA, srdB, strideA, strideB, sA0, sB0, splitk, depth, vbase_acc, lds0=0):
    nA = RA * 8 // 256; nB = RB * 8 // 256; nch = nA + nB
    stage_bytes = (RA + RB) * 144
    VS = 128
    a("v_lshrrev_b32 v1, 3, v0")
    a("v_and_b32 v2, 7, v0")
    a("v_lshlrev_b32 v2, 4, v2")
    a(f"s_mov_b32 s40, {strideA}")
    a("v_mul_lo_u32 v3, v1, s40")
    a(f"v_add3_u32 v3, v3, v2, s{sA0}")
    a(f"s_mov_b32 s40, {strideB}")
    a("v_mul_lo_u32 v4, v1, s40")
    a(f"v_add3_u32 v4, v4, v2, s{sB0}")
    a("s_movk_i32 s40, 144")
    a("v_mul_lo_u32 v5, v1, s40")
    a("v_add_u32 v5, v5, v2")
    if lds0: a(f"v_add_u32 v5, {lds0}, v5")
    for i in range(1, max(nA, nB)):
        if i < nA:
            a(f"v_add_u32 v{6+i-1}, {32*i*strideA}, v3")
        if i < nB:
            a(f"v_add_u32 v{9+i-1}, {32*i*strideB}, v4")
    offA = [3] + [6+i for i in range(nA-1)]
    offB = [4] + [9+i for i in range(nB-1)]
    def issue(step, slot):
        base = VS + slot * nch * 4
        for i in range(nA):
            a(f"buffer_load_dwordx4 v[{base+4*i}:{base+4*i+3}], v{offA[i]}, s[{srdA}:{srdA+3}], s41 offen")
        for i in range(nB):
            b = base + 4*(nA+i)
            a(f"buffer_load_dwordx4 v[{b}:{b+3}], v{offB[i]}, s[{srdB}:{srdB+3}], s41 offen")
    a("v_and_b32 v12, 63, v0")
    a("v_lshrrev_b32 v13, 6, v0")
    a("v_and_b32 v14, 31, v12")
    a("v_lshrrev_b32 v15, 5, v12")
    a("v_mul_lo_u32 v16, v14, s40")
    a("v_lshl_add_u32 v16, v15, 4, v16")
    if lds0: a(f"v_add_u32 v16, {lds0}, v16")
    if splitk:
        a("v_lshl_add_u32 v16, v13, 5, v16")
        a(f"v_add_u32 v17, {RA*144}, v16")
    else:
        a("v_and_b32 v18, 1, v13")
        a("v_lshrrev_b32 v19, 1, v13")
        a(f"s_movk_i32 s42, {64*144}")
        a("v_mul_lo_u32 v18, v18, s42")
        a("v_mul_lo_u32 v19, v19, s42")
        a(f"v_add_u32 v17, {RA*144}, v16")
        a("v_add_u32 v17, v17, v19")
        a("v_add_u32 v16, v16, v18")
    a(f"v_add_u32 v56, {stage_bytes}, v5")
    a(f"v_add_u32 v57, {stage_bytes}, v16")
    a(f"v_add_u32 v58, {stage_bytes}, v17")
    for r in range(64):
        a(f"v_mov_b32 v{vbase_acc+r}, 0")
    d = min(depth, nsteps)
    for p in range(d):
        a(f"s_movk_i32 s41, {p*128}")
        issue(p, p)
    for k in range(nsteps):
        slot = k % depth
        rem = min(nsteps - 1 - k, depth - 1)
        a(f"s_waitcnt vmcnt({rem*nch})")
        base = VS + slot * nch * 4
        lb = 0
        vw, vA, vB = (5, 16, 17) if (k & 1) == 0 else (56, 57, 58)
        for i in range(nA):
            a(f"ds_write_b128 v{vw}, v[{base+4*i}:{base+4*i+3}] offset:{lb + 32*i*144}")
        for i in range(nB):
            b = base + 4*(nA+i)
            a(f"ds_write_b128 v{vw}, v[{b}:{b+3}] offset:{lb + RA*144 + 32*i*144}")
        a("s_waitcnt lgkmcnt(0)")
        if k + depth < nsteps:
            a(f"s_movk_i32 s41, {(k+depth)*128}")
            issue(k + depth, slot)
        a("s_barrier")
        subs = [0] if splitk else [0, 1, 2, 3]
        for ks in subs:
            f = 20 + 16 * (subs.index(ks) & 1)
            a(f"ds_read_b128 v[{f}:{f+3}], v{vA} offset:{lb + ks*32}")
            a(f"ds_read_b128 v[{f+4}:{f+7}], v{vA} offset:{lb + ks*32 + 32*144}")
            a(f"ds_read_b128 v[{f+8}:{f+11}], v{vB} offset:{lb + ks*32}")
            a(f"ds_read_b128 v[{f+12}:{f+15}], v{vB} offset:{lb + ks*32 + 32*144}")
            a("s_waitcnt lgkmcnt(0)")
            for tn in range(2):
                for tm in range(2):
                    c = vbase_acc + 16*(2*tn+tm)
                    a(f"v_mfma_f32_32x32x16_bf16 v[{c}:{c+15}], v[{f+4*tn}:{f+4*tn+3}], v[{f+8+4*tm}:{f+8+4*tm+3}], v[{c}:{c+15}]")
    a("s_nop 15")
    a("s_nop 3")

def gen_k2(a):
    K = "mid_kernel"
    a(f".globl {K}\n.p2align 8\n.type {K},@function")
    a.label(K)
    a("s_load_dwordx2 s[4:5], s[0:1], %d" % KA_WS)
    a("s_cmp_lt_u32 s2, 256")
    a("s_cbranch_scc1 L_conv")
    a("s_cmp_lt_u32 s2, 512")
    a("s_cbranch_scc1 L_g1")
    a("s_endpgm")
    a.label("L_g1")
    a("s_sub_u32 s3, s2, 256")
    a("s_and_b32 s20, s3, 15")
    a("s_lshr_b32 s21, s3, 4")
    a("s_cmp_ge_u32 s20, 14")
    a("s_cbranch_scc1 L_end_mid")
    a("s_load_dwordx2 s[6:7], s[0:1], %d" % KA_B1)
    a("s_waitcnt lgkmcnt(0)")
    srd(a, 8, 4, 1835008, WS_W1T)
    srd(a, 12, 4, 0x200000, WS_XN)
    srd(a, 16, 4, 7340032, WS_H)
    srd(a, 24, 6, 3584)
    a("s_lshl_b32 s22, s20, 17")
    a("s_lshl_b32 s23, s21, 17")
    gemm_core(a, "g1", 128, 128, 8, 8, 12, 1024, 1024, 22, 23, False, 3, 64)
    a("v_and_b32 v18, 1, v13")
    a("v_lshrrev_b32 v19, 1, v13")
    a("s_lshl_b32 s22, s20, 7")
    a("v_lshl_add_u32 v20, v18, 6, s22")
    a("v_lshl_add_u32 v20, v15, 2, v20")
    a("v_lshlrev_b32 v21, 1, v20")
    for tn in range(2):
        for g in range(4):
            a(f"buffer_load_dwordx2 v[{128+2*(4*tn+g)}:{129+2*(4*tn+g)}], v21, s[24:27], 0 offen offset:{64*tn+16*g}")
    a("s_lshl_b32 s23, s21, 7")
    a("v_lshl_add_u32 v22, v19, 6, s23")
    a("v_add_u32 v22, v22, v14")
    a("s_movk_i32 s40, 3584")
    a("v_mul_lo_u32 v22, v22, s40")
    a("v_add_u32 v22, v22, v21")
    a(f"v_add_u32 v23, {32*3584}, v22")
    a("s_waitcnt vmcnt(0)")
    for tn in range(2):
        for g in range(4):
            bl = 128 + 2*(4*tn+g)
            a(f"v_lshlrev_b32 v24, 16, v{bl}")
            a(f"v_and_b32 v25, 0xffff0000, v{bl}")
            a(f"v_lshlrev_b32 v26, 16, v{bl+1}")
            a(f"v_and_b32 v27, 0xffff0000, v{bl+1}")
            for tm in range(2):
                c = 64 + 16*(2*tn+tm) + 4*g
                for r in range(4):
                    x = c + r
                    bf16r(a, x, x)
                    a(f"v_add_f32 v{x}, v{x}, v{24+r}")
                    bf16r(a, x, x)
                    a(f"v_mul_f32 v28, v{x}, v{x}")
                    a(f"v_mul_f32 v28, v28, v{x}")
                    a(f"v_fmac_f32 v{x}, 0, v28") if False else None
                    a(f"v_mov_b32 v29, v{x}")
                    a(f"v_fmac_f32 v29, 0x3d372713, v28")
                    a(f"v_mul_f32 v29, 0xc0135761, v29")
                    a(f"v_exp_f32 v29, v29")
                    a("s_nop 0")
                    a(f"v_add_f32 v29, 1.0, v29")
                    a(f"v_rcp_f32 v29, v29")
                    a("s_nop 0")
                    a(f"v_mul_f32 v{x}, v{x}, v29")
                a(f"v_cvt_pk_bf16_f32 v30, v{c}, v{c+1}")
                a(f"v_cvt_pk_bf16_f32 v31, v{c+2}, v{c+3}")
                a(f"buffer_store_dwordx2 v[30:31], v{22+tm}, s[16:19], 0 offen offset:{64*tn+16*g}")
                a("s_nop 1")
    a.label("L_end_mid")
    a("s_endpgm")
    a.label("L_conv")
    a("s_load_dwordx2 s[6:7], s[0:1], %d" % KA_DSKIP)
    a("v_lshrrev_b32 v13, 6, v0")
    a("v_and_b32 v12, 63, v0")
    a("s_nop 0")
    a("v_readfirstlane_b32 s3, v13")
    a("s_lshr_b32 s20, s3, 1")
    a("s_and_b32 s21, s3, 1")
    a("s_lshl_b32 s22, s2, 1")
    a("s_add_u32 s22, s22, s20")
    a("s_waitcnt lgkmcnt(0)")
    srd(a, 8, 4, 512*KR_STRIDE, WS_KR)
    srd(a, 12, 4, 0x200000, WS_XNT)
    srd(a, 16, 4, 0x200000, WS_YAT)
    a("s_lshr_b32 s23, s22, 1")
    a("s_lshl_b32 s23, s23, 2")
    a("s_load_dword s24, s[6:7], s23")
    a("s_mul_i32 s25, s20, 40960")
    a(f"s_mul_i32 s26, s22, {KR_STRIDE}")
    a("v_lshlrev_b32 v3, 4, v12")
    for ci in range(4):
        a(f"s_lshl_b32 s27, s21, 3")
        a(f"s_add_u32 s27, s27, {2*ci}")
        a("s_add_u32 s27, s27, s26")
        a("v_add_u32 v4, s27, v3")
        for j in range(5):
            a(f"buffer_load_dwordx4 v[{32+20*ci+4*j}:{35+20*ci+4*j}], v4, s[8:11], 0 offen offset:{1024*j if j < 4 else 0}" if j < 4 else
              f"buffer_load_dwordx4 v[{32+20*ci+4*j}:{35+20*ci+4*j}], v4, s[8:11], s46 offen") if j < 4 else None
        a("s_movk_i32 s46, 4096")
        a(f"buffer_load_dwordx4 v[{32+20*ci+16}:{35+20*ci+16}], v4, s[8:11], s46 offen")
    a("s_lshl_b32 s27, s22, 12")
    a("s_lshl_b32 s28, s21, 11")
    a("s_add_u32 s27, s27, s28")
    a("v_add_u32 v5, s27, v3")
    a("buffer_load_dwordx4 v[112:115], v5, s[12:15], 0 offen")
    a("buffer_load_dwordx4 v[116:119], v5, s[12:15], 0 offen offset:1024")
    for r in range(4):
        a(f"v_mov_b32 v{120+r}, 0")
    a("s_mul_i32 s28, s21, 1280")
    a("s_add_u32 s28, s28, s25")
    a("s_add_u32 s28, s28, 33280")
    a("v_add_u32 v6, s28, v3")
    a("ds_write_b128 v6, v[120:123]")
    a("v_cmp_gt_u32 vcc, 16, v12")
    a("s_and_saveexec_b64 s[30:31], vcc")
    a("ds_write_b128 v6, v[120:123] offset:1024")
    a("s_mov_b64 exec, s[30:31]")
    a("s_waitcnt vmcnt(0)")
    for ci in range(4):
        a(f"s_lshl_b32 s27, s21, 2")
        a(f"s_add_u32 s27, s27, {ci}")
        a("s_mul_i32 s27, s27, 4160")
        a("s_add_u32 s27, s27, s25")
        a("v_add_u32 v4, s27, v3")
        for j in range(4):
            a(f"ds_write_b128 v4, v[{32+20*ci+4*j}:{35+20*ci+4*j}] offset:{1024*j}")
        a("v_cmp_gt_u32 vcc, 4, v12")
        a("s_and_saveexec_b64 s[30:31], vcc")
        a(f"ds_write_b128 v4, v[{32+20*ci+16}:{35+20*ci+16}] offset:4096")
        a("s_mov_b64 exec, s[30:31]")
    a("s_lshl_b32 s27, s21, 7")
    a("v_add_u32 v7, s27, v12")
    a("v_lshrrev_b32 v8, 2, v7")
    a("v_and_b32 v9, 3, v7")
    a("s_movk_i32 s40, 80")
    a("v_mul_lo_u32 v8, v8, s40")
    a("v_lshl_add_u32 v8, v9, 4, v8")
    a("s_add_u32 s27, s25, %d" % (33280 + 32*80))
    a("v_add_u32 v8, s27, v8")
    a("ds_write_b128 v8, v[112:115]")
    a("ds_write_b128 v8, v[116:119] offset:%d" % (16*80))
    a("s_waitcnt lgkmcnt(0)")
    a("s_barrier")
    a("v_and_b32 v14, 31, v12")
    a("v_lshrrev_b32 v15, 5, v12")
    a("v_and_b32 v16, 7, v14")
    a("v_sub_u32 v16, 7, v16")
    a("s_movk_i32 s40, 4160")
    a("v_mul_lo_u32 v16, v16, s40")
    a("v_lshrrev_b32 v17, 3, v14")
    a("v_lshlrev_b32 v17, 4, v17")
    a("v_sub_u32 v16, v16, v17")
    a("v_lshl_add_u32 v16, v15, 4, v16")
    a("s_lshl_b32 s27, s21, 5")
    a("s_add_u32 s27, s27, s25")
    a("v_add_u32 v16, s27, v16")
    a("s_movk_i32 s40, 80")
    a("v_mul_lo_u32 v17, v14, s40")
    a("v_lshl_add_u32 v17, v15, 4, v17")
    a("s_add_u32 s27, s27, 33280")
    a("v_add_u32 v17, s27, v17")
    for r in range(32):
        a(f"v_mov_b32 v{64+r}, 0")
    for k in range(64):
        f = 20 + 12*(k & 1)
        a(f"ds_read_b128 v[{f}:{f+3}], v16 offset:{4080 - 64*k}")
        a(f"ds_read_b128 v[{f+4}:{f+7}], v17 offset:{(64-k)*80}")
        if k < 32:
            a(f"ds_read_b128 v[{f+8}:{f+11}], v17 offset:{(32-k)*80}")
        a("s_waitcnt lgkmcnt(0)")
        a(f"v_mfma_f32_32x32x16_bf16 v[80:95], v[{f}:{f+3}], v[{f+4}:{f+7}], v[80:95]")
        if k < 32:
            a(f"v_mfma_f32_32x32x16_bf16 v[64:79], v[{f}:{f+3}], v[{f+8}:{f+11}], v[64:79]")
    a("s_nop 15")
    a("s_nop 3")
    a("s_barrier")
    a("s_lshl_b32 s27, s21, 12")
    a("s_add_u32 s27, s27, s25")
    a("v_add_u32 v4, s27, v3")
    a("s_cmp_eq_u32 s21, 0")
    a("s_cbranch_scc0 L_cx1")
    for j in range(4):
        a(f"ds_write_b128 v4, v[{80+4*j}:{83+4*j}] offset:{1024*j}")
    a("s_branch L_cx2")
    a.label("L_cx1")
    for j in range(4):
        a(f"ds_write_b128 v4, v[{64+4*j}:{67+4*j}] offset:{1024*j}")
    for r in range(16):
        a(f"v_mov_b32 v{64+r}, v{80+r}")
    a.label("L_cx2")
    a("s_waitcnt lgkmcnt(0)")
    a("s_barrier")
    a("s_xor_b32 s27, s21, 1")
    a("s_lshl_b32 s27, s27, 12")
    a("s_add_u32 s27, s27, s25")
    a("v_add_u32 v4, s27, v3")
    for j in range(4):
        a(f"ds_read_b128 v[{80+4*j}:{83+4*j}], v4 offset:{1024*j}")
    a("s_movk_i32 s40, 80")
    a("v_mul_lo_u32 v5, v14, s40")
    a("v_lshl_add_u32 v5, v15, 3, v5")
    a("s_mul_i32 s27, s21, 2560")
    a("s_add_u32 s27, s27, s25")
    a("s_add_u32 s27, s27, %d" % (33280 + 32*80))
    a("v_add_u32 v5, s27, v5")
    for g in range(4):
        a(f"ds_read_b64 v[{96+2*g}:{97+2*g}], v5 offset:{16*g}")
    a("s_and_b32 s27, s22, 1")
    a("s_lshl_b32 s27, s27, 4")
    a("s_lshr_b32 s24, s24, s27")
    a("s_lshl_b32 s24, s24, 16")
    a("v_lshlrev_b32 v6, 6, v14")
    a("v_lshl_add_u32 v6, v15, 3, v6")
    a("s_lshl_b32 s27, s22, 12")
    a("s_lshl_b32 s28, s21, 11")
    a("s_add_u32 s27, s27, s28")
    a("v_add_u32 v6, s27, v6")
    a("s_waitcnt lgkmcnt(0)")
    for g in range(4):
        a(f"v_lshlrev_b32 v24, 16, v{96+2*g}")
        a(f"v_and_b32 v25, 0xffff0000, v{96+2*g}")
        a(f"v_lshlrev_b32 v26, 16, v{97+2*g}")
        a(f"v_and_b32 v27, 0xffff0000, v{97+2*g}")
        for r in range(4):
            x = 64 + 4*g + r
            a(f"v_add_f32 v{x}, v{x}, v{80+4*g+r}")
            bf16r(a, x, x)
            a(f"v_mul_f32 v{24+r}, s24, v{24+r}")
            bf16r(a, 24+r, 24+r)
            a(f"v_add_f32 v{x}, v{x}, v{24+r}")
        a(f"v_cvt_pk_bf16_f32 v30, v{64+4*g}, v{65+4*g}")
        a(f"v_cvt_pk_bf16_f32 v31, v{66+4*g}, v{67+4*g}")
        a(f"buffer_store_dwordx2 v[30:31], v6, s[16:19], 0 offen offset:{16*g}")
        a("s_nop 1")
    a("s_endpgm")

def gen_k3(a):
    K = "fin_kernel"
    a(f".globl {K}\n.p2align 8\n.type {K},@function")
    a.label(K)
    a("s_cmp_ge_u32 s2, 256")
    a("s_cbranch_scc1 L_end_fin")
    a("s_load_dwordx2 s[4:5], s[0:1], %d" % KA_WS)
    a("s_load_dwordx2 s[6:7], s[0:1], %d" % KA_B2)
    a("s_load_dwordx2 s[28:29], s[0:1], %d" % KA_U)
    a("s_load_dwordx2 s[30:31], s[0:1], %d" % KA_OUT)
    a("s_and_b32 s20, s2, 7")
    a("s_lshr_b32 s21, s2, 3")
    a("s_waitcnt lgkmcnt(0)")
    srd(a, 8, 4, 1835008, WS_W2T)
    srd(a, 12, 4, 7340032, WS_H)
    srd(a, 16, 4, 0x200000, WS_YAT)
    srd(a, 24, 6, 1024)
    srd(a, 32, 28, 0x200000)
    srd(a, 36, 30, 0x200000)
    a("s_mul_i32 s22, s20, %d" % (64*3584))
    a("s_mul_i32 s23, s21, %d" % (64*3584))
    gemm_core(a, "g2", 64, 64, 28, 8, 12, 3584, 3584, 22, 23, True, 4, 64)
    a("s_barrier")
    a("v_readfirstlane_b32 s3, v13")
    a("v_lshlrev_b32 v3, 4, v12")
    for qd in range(4):
        lab = a.newlabel("L_rq")
        a(f"s_cmp_eq_u32 s3, {qd}")
        a(f"s_cbranch_scc1 {lab}")
        a(f"s_sub_u32 s40, s3, {qd+1}")
        a("s_and_b32 s40, s40, 3")
        a("s_lshl_b32 s40, s40, 12")
        a(f"s_add_u32 s40, s40, {qd*12288}")
        a("v_add_u32 v4, s40, v3")
        for j in range(4):
            a(f"ds_write_b128 v4, v[{64+16*qd+4*j}:{67+16*qd+4*j}] offset:{1024*j}")
        a.label(lab)
    a("s_waitcnt lgkmcnt(0)")
    a("s_barrier")
    for qd in range(4):
        lab = a.newlabel("L_mq")
        a(f"s_cmp_lg_u32 s3, {qd}")
        a(f"s_cbranch_scc1 {lab}")
        for r in range(16):
            a(f"v_mov_b32 v{48+r}, v{64+16*qd+r}")
        a.label(lab)
    a("s_mul_i32 s40, s3, 12288")
    a("v_add_u32 v4, s40, v3")
    for sl in range(3):
        for j in range(4):
            a(f"ds_read_b128 v[{64+16*sl+4*j}:{67+16*sl+4*j}], v4 offset:{4096*sl+1024*j}")
    a("s_lshr_b32 s40, s3, 1")
    a("s_and_b32 s41, s3, 1")
    a("s_lshl_b32 s42, s20, 6")
    a("s_lshl_b32 s40, s40, 5")
    a("s_add_u32 s42, s42, s40")
    a("v_lshl_add_u32 v20, v15, 2, s42")
    a("v_lshlrev_b32 v21, 1, v20")
    a("s_lshl_b32 s43, s21, 6")
    a("s_lshl_b32 s41, s41, 5")
    a("s_add_u32 s43, s43, s41")
    a("v_add_u32 v22, s43, v14")
    a("v_lshl_add_u32 v23, v22, 10, v21")
    a("v_lshlrev_b32 v24, 12, v20")
    a("v_lshl_add_u32 v24, v22, 1, v24")
    for g in range(4):
        a(f"buffer_load_dwordx2 v[{112+2*g}:{113+2*g}], v21, s[24:27], 0 offen offset:{16*g}")
        a(f"buffer_load_dwordx2 v[{120+2*g}:{121+2*g}], v23, s[32:35], 0 offen offset:{16*g}")
    for g in range(4):
        for r in range(4):
            a(f"s_mov_b32 s44, {(8*g+r)*4096}")
            a(f"buffer_load_ushort v{128+4*g+r}, v24, s[16:19], s44 offen")
    a("s_waitcnt vmcnt(0) lgkmcnt(0)")
    for g in range(4):
        for half in range(2):
            a(f"v_lshlrev_b32 v{26+2*half}, 16, v{112+2*g+half}")
            a(f"v_and_b32 v{27+2*half}, 0xffff0000, v{112+2*g+half}")
            a(f"v_lshlrev_b32 v{30+2*half}, 16, v{120+2*g+half}")
            a(f"v_and_b32 v{31+2*half}, 0xffff0000, v{120+2*g+half}")
        for r in range(4):
            x = 48 + 4*g + r
            a(f"v_add_f32 v{x}, v{x}, v{64+4*g+r}")
            a(f"v_add_f32 v{x}, v{x}, v{80+4*g+r}")
            a(f"v_add_f32 v{x}, v{x}, v{96+4*g+r}")
            bf16r(a, x, x)
            a(f"v_add_f32 v{x}, v{x}, v{26+r}")
            bf16r(a, x, x)
            a(f"v_lshlrev_b32 v34, 16, v{128+4*g+r}")
            a(f"v_add_f32 v34, v34, v{30+r}")
            bf16r(a, 34, 34)
            a(f"v_add_f32 v{x}, v{x}, v34")
        a(f"v_cvt_pk_bf16_f32 v36, v{48+4*g}, v{49+4*g}")
        a(f"v_cvt_pk_bf16_f32 v37, v{50+4*g}, v{51+4*g}")
        a(f"buffer_store_dwordx2 v[36:37], v23, s[36:39], 0 offen offset:{16*g}")
        a("s_nop 1")
    a.label("L_end_fin")
    a("s_endpgm")

def kd(name, vgpr, sgpr=102, accum=None):
    accum = accum or ((vgpr + 3) // 4 * 4)
    return f""".amdhsa_kernel {name}
  .amdhsa_next_free_vgpr {vgpr}
  .amdhsa_next_free_sgpr {sgpr}
  .amdhsa_accum_offset {accum}
  .amdhsa_group_segment_fixed_size 0
  .amdhsa_kernarg_size 120
  .amdhsa_user_sgpr_count 2
  .amdhsa_user_sgpr_kernarg_segment_ptr 1
  .amdhsa_system_sgpr_workgroup_id_x 1
.end_amdhsa_kernel
"""

def main():
    a = Asm()
    hdr = "; generated by dev/gen.py (own generator)\n"
    hdr += "; @launch kernel=prep_kernel grid=(880,1,1) block=(256,1,1) lds=16384\n"
    hdr += "; @launch kernel=mid_kernel grid=(512,1,1) block=(256,1,1) lds=81920\n"
    hdr += "; @launch kernel=fin_kernel grid=(256,1,1) block=(256,1,1) lds=49152\n"
    hdr += '.amdgcn_target "amdgcn-amd-amdhsa--gfx950"\n.text\n'
    gen_prep(a)
    gen_k2(a)
    gen_k3(a)
    txt = hdr + a.text() + '.section .rodata,"a"\n.p2align 6\n' + kd("prep_kernel", 96) + kd("mid_kernel", 256) + kd("fin_kernel", 256)
    open(f"cdna_kernels/{NAME}.s", "w").write(txt)

main()
```

```python
import sys
sys.path.insert(0, "dev")
from asmlib import Asm, vr, sr, ar

NAME = "parallel_sum__ssm_conv_s4d__dense_activation_gelu__prompt"
WS_XN   = 0x000000
WS_XNT  = 0x200000
WS_KR   = 0x400000; KR_STRIDE = 4224
WS_W1T  = 0x680000
WS_W2T  = 0x880000
WS_H    = 0xA80000
WS_YAT  = 0x1200000

KA_U, KA_LOGA, KA_AIM, KA_CR, KA_CI, KA_LOGDT, KA_DSKIP, KA_X, KA_W1, KA_B1, KA_W2, KA_B2, KA_OUT, KA_DBG, KA_WS = [8*i for i in range(15)]

def srd(a, s, ptr, size, add=0):
    if add:
        a(f"s_add_u32 s{s}, s{ptr}, {add}")
        a(f"s_addc_u32 s{s+1}, s{ptr+1}, 0")
    else:
        a(f"s_mov_b32 s{s}, s{ptr}")
        a(f"s_mov_b32 s{s+1}, s{ptr+1}")
    a(f"s_mov_b32 s{s+2}, {size}")
    a(f"s_mov_b32 s{s+3}, 0x00020000")

STAMPS = False
def stamp(a, idx):
    if not STAMPS: return
    a(f"s_memtime s[{70+2*idx}:{71+2*idx}]")
    a("s_waitcnt lgkmcnt(0)")
def stamp_out(a, n, wg=0):
    if not STAMPS: return
    lab = a.newlabel("L_st")
    a(f"s_cmp_lg_u32 s2, {wg}")
    a(f"s_cbranch_scc1 {lab}")
    a("s_load_dwordx2 s[92:93], s[0:1], %d" % KA_DBG)
    a("s_waitcnt lgkmcnt(0)")
    a("v_lshrrev_b32 v1, 6, v0")
    a("v_lshlrev_b32 v1, 6, v1")
    a("v_mov_b32 v3, s93")
    a("v_add_co_u32 v2, vcc, s92, v1")
    a("s_nop 1")
    a("v_addc_co_u32 v3, vcc, 0, v3, vcc")
    for i in range(n):
        a(f"v_mov_b32 v4, s{70+2*i}")
        a(f"global_store_dword v[2:3], v4, off offset:{4*i}")
        a("s_nop 2")
    a.label(lab)

def bf16r(a, d, s):
    a(f"v_cvt_pk_bf16_f32 v{d}, v{s}, v{s}")
    a(f"v_lshlrev_b32 v{d}, 16, v{d}")

def transpose_out(a, lds_row_stride, v_ldsaddr, srd_dst, v_dst, dst_row_stride, vt=32):
    a("s_mov_b32 s44, 0x05040100")
    a("s_mov_b32 s45, 0x07060302")
    for j in range(16):
        a(f"ds_read_b32 v{vt+j}, v{v_ldsaddr} offset:{j*lds_row_stride}")
    a("s_waitcnt lgkmcnt(0)")
    for j in range(8):
        a(f"v_perm_b32 v{vt+16+j}, v{vt+2*j+1}, v{vt+2*j}, s44")
        a(f"v_perm_b32 v{vt+24+j}, v{vt+2*j+1}, v{vt+2*j}, s45")
    a(f"buffer_store_dwordx4 v[{vt+16}:{vt+19}], v{v_dst}, s[{srd_dst}:{srd_dst+3}], 0 offen")
    a(f"buffer_store_dwordx4 v[{vt+20}:{vt+23}], v{v_dst}, s[{srd_dst}:{srd_dst+3}], 0 offen offset:16")
    a(f"v_add_u32 v{v_dst}, {dst_row_stride}, v{v_dst}")
    a(f"buffer_store_dwordx4 v[{vt+24}:{vt+27}], v{v_dst}, s[{srd_dst}:{srd_dst+3}], 0 offen")
    a(f"buffer_store_dwordx4 v[{vt+28}:{vt+31}], v{v_dst}, s[{srd_dst}:{srd_dst+3}], 0 offen offset:16")

def wave_reduce4(a, regs, tmp):
    for x in (1, 2, 4, 8, 16):
        for r, t in zip(regs, tmp):
            a(f"ds_swizzle_b32 v{t}, v{r} offset:{(x << 10) | 0x1f}")
        a("s_waitcnt lgkmcnt(0)")
        for r, t in zip(regs, tmp):
            a(f"v_add_f32 v{r}, v{r}, v{t}")
    a("s_nop 1")
    for i, r in enumerate(regs):
        a(f"v_readlane_b32 s{60+2*i}, v{r}, 0")
        a(f"v_readlane_b32 s{61+2*i}, v{r}, 32")
    a("s_nop 1")
    for i, r in enumerate(regs):
        a(f"v_mov_b32 v{r}, s{60+2*i}")
        a(f"v_add_f32 v{r}, s{61+2*i}, v{r}")

def gen_prep(a):
    K = "prep_kernel"
    a(f".globl {K}\n.p2align 8\n.type {K},@function")
    a.label(K)
    a("s_load_dwordx2 s[4:5], s[0:1], %d" % KA_WS)
    a("s_cmp_lt_u32 s2, 512")
    a("s_cbranch_scc1 L_kgen")
    a("s_cmp_lt_u32 s2, 640")
    a("s_cbranch_scc1 L_ln")
    a("s_cmp_lt_u32 s2, 768")
    a("s_cbranch_scc1 L_w1")
    a("s_cmp_lt_u32 s2, 880")
    a("s_cbranch_scc1 L_w2")
    a("s_endpgm")
    a.label("L_ln")
    a("s_load_dwordx2 s[6:7], s[0:1], %d" % KA_U)
    a("s_sub_u32 s3, s2, 512")
    a("v_and_b32 v1, 63, v0")
    a("v_lshrrev_b32 v2, 6, v0")
    a("s_lshl_b32 s20, s3, 14")
    a("v_lshlrev_b32 v3, 12, v2")
    a("v_lshl_add_u32 v3, v1, 4, v3")
    a("v_add_u32 v4, s20, v3")
    a("s_waitcnt lgkmcnt(0)")
    srd(a, 8, 6, 0x200000)
    srd(a, 12, 4, 0x200000, WS_XN)
    srd(a, 16, 4, 0x200000, WS_XNT)
    for j in range(4):
        a(f"buffer_load_dwordx4 v[{8+4*j}:{11+4*j}], v4, s[8:11], 0 offen offset:{1024*j}")
    a("s_waitcnt vmcnt(0)")
    for j in range(4):
        for e in range(4):
            a(f"v_lshlrev_b32 v{32+8*j+2*e}, 16, v{8+4*j+e}")
            a(f"v_and_b32 v{33+8*j+2*e}, 0xffff0000, v{8+4*j+e}")
    for j in range(4):
        a(f"v_add_f32 v{64+j}, v{32+8*j}, v{33+8*j}")
        for e in range(2, 8):
            a(f"v_add_f32 v{64+j}, v{64+j}, v{32+8*j+e}")
    wave_reduce4(a, [64, 65, 66, 67], [68, 69, 70, 71])
    for j in range(4):
        a(f"v_mul_f32 v{64+j}, 0x3b000000, v{64+j}")
    for j in range(4):
        for e in range(8):
            a(f"v_sub_f32 v76, v{32+8*j+e}, v{64+j}")
            if e == 0:
                a(f"v_mul_f32 v{72+j}, v76, v76")
            else:
                a(f"v_fmac_f32 v{72+j}, v76, v76")
    wave_reduce4(a, [72, 73, 74, 75], [68, 69, 70, 71])
    for j in range(4):
        a(f"v_mul_f32 v{72+j}, 0x3b000000, v{72+j}")
        bf16r(a, 64+j, 64+j)
        bf16r(a, 72+j, 72+j)
        a(f"v_add_f32 v{72+j}, 0x3727c5ac, v{72+j}")
        bf16r(a, 72+j, 72+j)
        a(f"v_sqrt_f32 v{72+j}, v{72+j}")
        a("s_nop 0")
        bf16r(a, 72+j, 72+j)
        a(f"v_rcp_f32 v{76+j}, v{72+j}")
    a("s_nop 0")
    for j in range(4):
        for e in range(8):
            r = 32+8*j+e
            a(f"v_sub_f32 v{r}, v{r}, v{64+j}")
            bf16r(a, r, r)
            a(f"v_mul_f32 v80, v{r}, v{76+j}")
            a(f"v_fma_f32 v81, -v80, v{72+j}, v{r}")
            a(f"v_fma_f32 v{r}, v81, v{76+j}, v80")
        for e in range(4):
            a(f"v_cvt_pk_bf16_f32 v{8+4*j+e}, v{32+8*j+2*e}, v{33+8*j+2*e}")
    for j in range(4):
        a(f"buffer_store_dwordx4 v[{8+4*j}:{11+4*j}], v4, s[12:15], 0 offen offset:{1024*j}")
        a(f"ds_write_b128 v3, v[{8+4*j}:{11+4*j}] offset:{1024*j}")
    a("s_waitcnt lgkmcnt(0)")
    a("s_barrier")
    a("v_lshlrev_b32 v5, 2, v0")
    a("v_lshlrev_b32 v6, 13, v0")
    a("s_lshl_b32 s20, s3, 5")
    a("v_add_u32 v6, s20, v6")
    transpose_out(a, 1024, 5, 16, 6, 4096)
    a("s_endpgm")
    a.label("L_w1")
    a("s_load_dwordx2 s[6:7], s[0:1], %d" % KA_W1)
    a("s_sub_u32 s3, s2, 640")
    a("s_and_b32 s21, s3, 7")
    a("s_lshr_b32 s20, s3, 3")
    a("s_cmp_eq_u32 s21, 7")
    a("s_cbranch_scc1 L_end_prep")
    a("s_lshl_b32 s20, s20, 5")
    a("s_lshl_b32 s21, s21, 8")
    a("s_movk_i32 s22, 3584")
    a("s_movk_i32 s23, 1024")
    a("s_waitcnt lgkmcnt(0)")
    srd(a, 8, 6, 1835008)
    srd(a, 12, 4, 1835008, WS_W1T)
    a("s_branch L_wt")
    a.label("L_w2")
    a("s_load_dwordx2 s[6:7], s[0:1], %d" % KA_W2)
    a("s_sub_u32 s3, s2, 768")
    a("s_and_b32 s21, s3, 1")
    a("s_lshr_b32 s20, s3, 1")
    a("s_lshl_b32 s20, s20, 5")
    a("s_lshl_b32 s21, s21, 8")
    a("s_movk_i32 s22, 1024")
    a("s_movk_i32 s23, 3584")
    a("s_waitcnt lgkmcnt(0)")
    srd(a, 8, 6, 1835008)
    srd(a, 12, 4, 1835008, WS_W2T)
    a.label("L_wt")
    a("v_lshrrev_b32 v1, 5, v0")
    a("v_and_b32 v2, 31, v0")
    a("v_lshlrev_b32 v2, 4, v2")
    a("v_add_u32 v3, s20, v1")
    a("v_mul_lo_u32 v3, v3, s22")
    a("s_lshl_b32 s24, s21, 1")
    a("v_add3_u32 v3, v3, v2, s24")
    a("s_lshl_b32 s25, s22, 3")
    a("v_lshl_add_u32 v4, v1, 9, v2")
    for i in range(4):
        a(f"buffer_load_dwordx4 v[{8+4*i}:{11+4*i}], v3, s[8:11], 0 offen")
        if i < 3:
            a("v_add_u32 v3, s25, v3")
    a("s_waitcnt vmcnt(0)")
    for i in range(4):
        a(f"ds_write_b128 v4, v[{8+4*i}:{11+4*i}] offset:{4096*i}")
    a("s_waitcnt lgkmcnt(0)")
    a("s_barrier")
    a("v_and_b32 v1, 127, v0")
    a("v_lshrrev_b32 v2, 7, v0")
    a("v_lshlrev_b32 v5, 13, v2")
    a("v_lshl_add_u32 v5, v1, 2, v5")
    a("v_lshl_add_u32 v6, v1, 1, s21")
    a("v_mul_lo_u32 v6, v6, s23")
    a("s_lshl_b32 s24, s20, 1")
    a("v_lshlrev_b32 v7, 5, v2")
    a("v_add3_u32 v6, v6, v7, s24")
    a("s_mov_b32 s44, 0x05040100")
    a("s_mov_b32 s45, 0x07060302")
    vt = 32
    for j in range(16):
        a(f"ds_read_b32 v{vt+j}, v5 offset:{j*512}")
    a("s_waitcnt lgkmcnt(0)")
    for j in range(8):
        a(f"v_perm_b32 v{vt+16+j}, v{vt+2*j+1}, v{vt+2*j}, s44")
        a(f"v_perm_b32 v{vt+24+j}, v{vt+2*j+1}, v{vt+2*j}, s45")
    a(f"buffer_store_dwordx4 v[{vt+16}:{vt+19}], v6, s[12:15], 0 offen")
    a(f"buffer_store_dwordx4 v[{vt+20}:{vt+23}], v6, s[12:15], 0 offen offset:16")
    a(f"v_add_u32 v6, s23, v6")
    a(f"buffer_store_dwordx4 v[{vt+24}:{vt+27}], v6, s[12:15], 0 offen")
    a(f"buffer_store_dwordx4 v[{vt+28}:{vt+31}], v6, s[12:15], 0 offen offset:16")
    a.label("L_end_prep")
    a("s_endpgm")
    a.label("L_kgen")
    a("s_load_dwordx4 s[8:11], s[0:1], %d" % KA_LOGA)
    a("s_load_dwordx4 s[12:15], s[0:1], %d" % KA_CR)
    a("s_load_dwordx2 s[16:17], s[0:1], %d" % KA_LOGDT)
    a("v_lshrrev_b32 v2, 6, v0")
    a("v_and_b32 v1, 63, v0")
    a("s_nop 0")
    a("v_readfirstlane_b32 s3, v2")
    a("s_waitcnt lgkmcnt(0)")
    a("s_lshr_b32 s18, s2, 1")
    a("s_lshl_b32 s18, s18, 2")
    a("s_load_dword s19, s[16:17], s18")
    srd(a, 20, 8, 131072)
    srd(a, 24, 10, 131072)
    srd(a, 28, 12, 131072)
    srd(a, 32, 14, 131072)
    srd(a, 36, 4, 512*KR_STRIDE, WS_KR)
    a("s_cmp_ge_u32 s3, 2")
    a("s_cbranch_scc1 L_kg_main")
    a("s_lshl_b32 s40, s2, 8")
    a("v_lshl_add_u32 v3, v0, 1, s40")
    a("buffer_load_ushort v4, v3, s[20:23], 0 offen")
    a("buffer_load_ushort v5, v3, s[24:27], 0 offen")
    a("buffer_load_ushort v6, v3, s[28:31], 0 offen")
    a("buffer_load_ushort v7, v3, s[32:35], 0 offen")
    a("s_waitcnt lgkmcnt(0)")
    a("s_and_b32 s41, s2, 1")
    a("s_lshl_b32 s41, s41, 4")
    a("s_lshr_b32 s19, s19, s41")
    a("s_lshl_b32 s19, s19, 16")
    a("v_mov_b32 v8, s19")
    a("v_mul_f32 v8, 0x3fb8aa3b, v8")
    a("v_exp_f32 v8, v8")
    a("s_nop 0")
    bf16r(a, 8, 8)
    a("s_waitcnt vmcnt(0)")
    for r in (4, 5, 6, 7):
        a(f"v_lshlrev_b32 v{r}, 16, v{r}")
    a("v_mul_f32 v4, 0x3fb8aa3b, v4")
    a("v_exp_f32 v4, v4")
    a("s_nop 0")
    bf16r(a, 4, 4)
    a("v_mul_f32 v4, v4, v8")
    a("v_mul_f32 v12, 0xbfb8aa3b, v4")
    a("v_mul_f32 v5, v5, v8")
    a("v_mul_f32 v13, 0x3e22f983, v5")
    a("v_mul_f32 v6, v6, v8")
    a("v_mul_f32 v7, v7, v8")
    a("v_add_f32 v14, v6, v6")
    a("v_add_f32 v15, v7, v7")
    a("v_lshlrev_b32 v3, 4, v0")
    a("ds_write_b128 v3, v[12:15]")
    a.label("L_kg_main")
    a("s_waitcnt lgkmcnt(0)")
    a("s_barrier")
    a("v_and_b32 v3, 15, v1")
    a("v_lshrrev_b32 v4, 4, v1")
    a("v_cvt_f32_u32 v20, v3")
    a("v_mul_f32 v21, 0x41800000, v20")
    a("v_mul_f32 v22, 0x42000000, v20")
    a("v_add_f32 v22, 0x43800000, v22")
    a("s_lshl_b32 s40, s3, 9")
    a("v_lshl_add_u32 v23, v4, 4, s40")
    for r in range(16):
        a(f"v_mov_b32 v{40+r}, 0")
    a("ds_read_b128 v[24:27], v23 offset:0")
    for g in range(8):
        p = 24 + 4*(g & 1)
        R = 56 + 24*(g & 1)
        B = [R + 2*w for w in range(4)]
        X = [R + 8 + 2*w for w in range(4)]
        Rr = [R + 16 + 2*w for w in range(4)]
        T = 104
        if g < 7:
            pn = 24 + 4*((g+1) & 1)
            a(f"ds_read_b128 v[{pn}:{pn+3}], v23 offset:{64*(g+1)}")
            a("s_waitcnt lgkmcnt(1)")
        else:
            a("s_waitcnt lgkmcnt(0)")
        pos = [20, 21, 22]
        for j in range(3):
            a(f"v_mul_f32 v{T+4*j}, v{p}, v{pos[j]}")
            a(f"v_mul_f32 v{T+4*j+1}, v{p+1}, v{pos[j]}")
        for j in range(3):
            a(f"v_exp_f32 v{T+4*j}, v{T+4*j}")
            a(f"v_fract_f32 v{T+4*j+1}, v{T+4*j+1}")
        for j in range(3):
            a(f"v_cos_f32 v{T+4*j+2}, v{T+4*j+1}")
            a(f"v_sin_f32 v{T+4*j+3}, v{T+4*j+1}")
        dst = [B[0], X[0], X[1]]
        for j in (1, 0, 2):
            a(f"v_mul_f32 v{dst[j]}, v{T+4*j}, v{T+4*j+2}")
            a(f"v_mul_f32 v{dst[j]+1}, v{T+4*j}, v{T+4*j+3}")
        def sq(d, s):
            a(f"v_mul_f32 v{T+12}, v{s+1}, v{s+1}")
            a(f"v_mul_f32 v{T+13}, v{s}, v{s+1}")
            a(f"v_fma_f32 v{d}, v{s}, v{s}, -v{T+12}")
            a(f"v_add_f32 v{d+1}, v{T+13}, v{T+13}")
        def cmul(d, x):
            a(f"v_mul_f32 v{T+14}, v{x+1}, v{p+3}")
            a(f"v_mul_f32 v{T+15}, v{x+1}, v{p+2}")
            a(f"v_fma_f32 v{d}, v{x}, v{p+2}, -v{T+14}")
            a(f"v_fma_f32 v{d+1}, -v{x}, v{p+3}, -v{T+15}")
        def mf(w, part):
            a(f"v_mfma_f32_16x16x4_f32 v[{40+4*w}:{43+4*w}], v{Rr[w]+part}, v{B[w]+part}, v[{40+4*w}:{43+4*w}]")
        cmul(Rr[0], X[0])
        sq(B[1], B[0])
        mf(0, 0)
        cmul(Rr[1], X[1])
        sq(X[2], X[1])
        mf(0, 1)
        sq(B[2], B[1])
        mf(1, 0)
        cmul(Rr[2], X[2])
        sq(X[3], X[2])
        mf(1, 1)
        sq(B[3], B[2])
        mf(2, 0)
        cmul(Rr[3], X[3])
        mf(2, 1)
        a("s_nop 1")
        mf(3, 0)
        mf(3, 1)
    a("s_nop 15")
    a("v_lshlrev_b32 v5, 8, v4")
    a("v_lshl_add_u32 v5, v3, 2, v5")
    a("s_lshl_b32 s40, s3, 12")
    a("v_add_u32 v5, s40, v5")
    for w in range(4):
        for r in range(4):
            a(f"ds_write_b32 v5, v{40+4*w+r} offset:{4096+1024*w+64*r}")
    a("s_waitcnt lgkmcnt(0)")
    a("s_barrier")
    a("v_lshlrev_b32 v5, 4, v0")
    for w in range(4):
        a(f"ds_read_b128 v[{24+4*w}:{27+4*w}], v5 offset:{4096+4096*w}")
    a("s_waitcnt lgkmcnt(0)")
    for r in range(4):
        a(f"v_add_f32 v{24+r}, v{24+r}, v{28+r}")
        a(f"v_add_f32 v{32+r}, v{32+r}, v{36+r}")
    for r in range(4):
        a(f"v_add_f32 v{24+r}, v{24+r}, v{32+r}")
    a("ds_write_b128 v5, v[24:27] offset:4096")
    a("s_waitcnt lgkmcnt(0)")
    a("s_barrier")
    a("v_lshlrev_b32 v3, 3, v0")
    a("v_sub_u32 v3, 2047, v3")
    a("v_mov_b32 v4, 0")
    for thr in (256, 512, 1024):
        a(f"v_cmp_le_u32 vcc, {thr}, v3")
        a("s_nop 1")
        a("v_addc_co_u32 v4, vcc, 0, v4, vcc")
    a("v_lshlrev_b32 v5, v4, 1")
    a("v_lshrrev_b32 v5, 1, v5")
    a("v_cmp_ne_u32 vcc, 0, v4")
    a("s_nop 1")
    a("v_cndmask_b32 v6, 0, 1, vcc")
    a("v_sub_u32 v5, v5, v6")
    a("v_lshlrev_b32 v7, 7, v6")
    a("v_lshlrev_b32 v8, 8, v4")
    a("v_sub_u32 v8, v8, v7")
    for e in range(8):
        a(f"v_subrev_u32 v9, {e}, v3")
        a("v_lshrrev_b32 v10, v4, v9")
        a("v_and_b32 v10, v10, v6")
        a("v_add3_u32 v10, v10, v9, v5")
        a("v_lshrrev_b32 v10, v4, v10")
        a("v_add_u32 v10, v10, v8")
        a("v_lshlrev_b32 v10, 2, v10")
        a(f"ds_read_b32 v{24+e}, v10 offset:4096")
    a("s_waitcnt lgkmcnt(0)")
    for e in range(4):
        a(f"v_cvt_pk_bf16_f32 v{32+e}, v{24+2*e}, v{25+2*e}")
    a(f"s_mul_i32 s40, s2, {KR_STRIDE}")
    a("v_lshl_add_u32 v5, v0, 4, s40")
    a("buffer_store_dwordx4 v[32:35], v5, s[36:39], 0 offen")
    a("v_cmp_gt_u32 vcc, 8, v0")
    a("s_and_saveexec_b64 s[42:43], vcc")
    a("s_cbranch_execz L_kg_end")
    for e in range(4):
        a(f"v_mov_b32 v{36+e}, 0")
    a("v_add_u32 v5, 4096, v5")
    a("buffer_store_dwordx4 v[36:39], v5, s[36:39], 0 offen")
    a.label("L_kg_end")
    a("s_endpgm")


def gemm_core(a, tag, RA, RB, nsteps, KS, srdA, srdB, strideA, strideB, sA0, sB0, splitk, depth, vbase_acc, lds0=0):
    RS = KS + 16
    cpr = KS // 16
    rows_per_pass = 256 // cpr
    nA = RA // rows_per_pass; nB = RB // rows_per_pass; nch = nA + nB
    stage_bytes = (RA + RB) * RS
    VS = 128
    sh = {8: 3, 16: 4}[cpr]
    a(f"v_lshrrev_b32 v1, {sh}, v0")
    a(f"v_and_b32 v2, {cpr-1}, v0")
    a("v_lshlrev_b32 v2, 4, v2")
    a(f"s_mov_b32 s40, {strideA}")
    a("v_mul_lo_u32 v3, v1, s40")
    a(f"v_add3_u32 v3, v3, v2, s{sA0}")
    a(f"s_mov_b32 s40, {strideB}")
    a("v_mul_lo_u32 v4, v1, s40")
    a(f"v_add3_u32 v4, v4, v2, s{sB0}")
    a(f"s_movk_i32 s40, {RS}")
    a("v_mul_lo_u32 v5, v1, s40")
    a("v_add_u32 v5, v5, v2")
    if lds0: a(f"v_add_u32 v5, {lds0}, v5")
    for i in range(1, max(nA, nB)):
        if i < nA:
            a(f"v_add_u32 v{6+i-1}, {rows_per_pass*i*strideA}, v3")
        if i < nB:
            a(f"v_add_u32 v{9+i-1}, {rows_per_pass*i*strideB}, v4")
    offA = [3] + [6+i for i in range(nA-1)]
    offB = [4] + [9+i for i in range(nB-1)]
    def issue(step):
        slot = step % depth
        a(f"s_movk_i32 s41, {step*KS}")
        base = VS + slot * nch * 4
        for i in range(nA):
            a(f"buffer_load_dwordx4 v[{base+4*i}:{base+4*i+3}], v{offA[i]}, s[{srdA}:{srdA+3}], s41 offen")
        for i in range(nB):
            b = base + 4*(nA+i)
            a(f"buffer_load_dwordx4 v[{b}:{b+3}], v{offB[i]}, s[{srdB}:{srdB+3}], s41 offen")
    def lds_write(step):
        slot = step % depth
        base = VS + slot * nch * 4
        vw = 5 if (step & 1) == 0 else 56
        for i in range(nA):
            a(f"ds_write_b128 v{vw}, v[{base+4*i}:{base+4*i+3}] offset:{rows_per_pass*i*RS}")
        for i in range(nB):
            b = base + 4*(nA+i)
            a(f"ds_write_b128 v{vw}, v[{b}:{b+3}] offset:{RA*RS + rows_per_pass*i*RS}")
    a("v_and_b32 v12, 63, v0")
    a("v_lshrrev_b32 v13, 6, v0")
    a("v_and_b32 v14, 31, v12")
    a("v_lshrrev_b32 v15, 5, v12")
    a("v_mul_lo_u32 v16, v14, s40")
    a("v_lshl_add_u32 v16, v15, 4, v16")
    if lds0: a(f"v_add_u32 v16, {lds0}, v16")
    if splitk:
        a(f"s_movk_i32 s42, {KS//4}")
        a("v_mul_lo_u32 v18, v13, s42")
        a("v_add_u32 v16, v16, v18")
        a(f"v_add_u32 v17, {RA*RS}, v16")
        S = KS // 128
    else:
        a("v_and_b32 v18, 1, v13")
        a("v_lshrrev_b32 v19, 1, v13")
        a(f"s_movk_i32 s42, {64*RS}")
        a("v_mul_lo_u32 v18, v18, s42")
        a("v_mul_lo_u32 v19, v19, s42")
        a(f"v_add_u32 v17, {RA*RS}, v16")
        a("v_add_u32 v17, v17, v19")
        a("v_add_u32 v16, v16, v18")
        S = KS // 32
    a(f"v_add_u32 v56, {stage_bytes}, v5")
    a(f"v_add_u32 v57, {stage_bytes}, v16")
    a(f"v_add_u32 v58, {stage_bytes}, v17")
    for p in range(min(depth, nsteps)):
        issue(p)
    for r in range(64):
        a(f"v_mov_b32 v{vbase_acc+r}, 0")
    a(f"s_waitcnt vmcnt({(min(depth, nsteps)-1)*nch})")
    lds_write(0)
    a("s_waitcnt lgkmcnt(0)")
    if depth < nsteps:
        issue(depth)
    a("s_barrier")
    stamp(a, 1)
    def reads(k, s_):
        vA, vB = (16, 17) if (k & 1) == 0 else (57, 58)
        f = 20 + 16 * (s_ & 1)
        a(f"ds_read_b128 v[{f}:{f+3}], v{vA} offset:{s_*32}")
        a(f"ds_read_b128 v[{f+4}:{f+7}], v{vA} offset:{s_*32 + 32*RS}")
        a(f"ds_read_b128 v[{f+8}:{f+11}], v{vB} offset:{s_*32}")
        a(f"ds_read_b128 v[{f+12}:{f+15}], v{vB} offset:{s_*32 + 32*RS}")
    def mfmas(s_):
        f = 20 + 16 * (s_ & 1)
        for tn in range(2):
            for tm in range(2):
                c = vbase_acc + 16*(2*tn+tm)
                a(f"v_mfma_f32_32x32x16_bf16 v[{c}:{c+15}], v[{f+4*tn}:{f+4*tn+3}], v[{f+8+4*tm}:{f+8+4*tm+3}], v[{c}:{c+15}]")
    for k in range(nsteps):
        more = k + 1 < nsteps
        if k == nsteps // 2: stamp(a, 2)
        reads(k, 0)
        if S > 1: reads(k, 1)
        wrote = False
        for s_ in range(S):
            pend = 4 if s_ + 1 < S else 0
            if wrote: pend += nch
            a(f"s_waitcnt lgkmcnt({pend})")
            mfmas(s_)
            if s_ + 2 < S:
                reads(k, s_ + 2)
            if more and not wrote and s_ + 2 >= S and (s_ == S - 2 or S == 1):
                outstanding = min(depth, nsteps - 1 - k)
                a(f"s_waitcnt vmcnt({(outstanding-1)*nch})")
                lds_write(k + 1)
                wrote = True
        if more:
            a("s_waitcnt lgkmcnt(0)")
            if k + 1 + depth < nsteps:
                issue(k + 1 + depth)
            a("s_barrier")
    a("s_nop 15")
    a("s_nop 3")

def gen_k2(a):
    K = "mid_kernel"
    a(f".globl {K}\n.p2align 8\n.type {K},@function")
    a.label(K)
    a("s_load_dwordx2 s[4:5], s[0:1], %d" % KA_WS)
    a("s_cmp_lt_u32 s2, 256")
    a("s_cbranch_scc1 L_conv")
    a("s_cmp_lt_u32 s2, 512")
    a("s_cbranch_scc1 L_g1")
    a("s_endpgm")
    a.label("L_g1")
    a("s_sub_u32 s3, s2, 256")
    a("s_and_b32 s21, s3, 7")
    a("s_lshr_b32 s20, s3, 3")
    a("s_cmp_ge_u32 s20, 28")
    a("s_cbranch_scc1 L_end_mid")
    a("s_cmp_ge_u32 s20, 14")
    a("s_cbranch_scc0 L_g1_lo")
    a("s_sub_u32 s20, s20, 14")
    a("s_add_u32 s21, s21, 8")
    a.label("L_g1_lo")
    a("s_load_dwordx2 s[6:7], s[0:1], %d" % KA_B1)
    a("s_waitcnt lgkmcnt(0)")
    srd(a, 8, 4, 1835008, WS_W1T)
    srd(a, 12, 4, 0x200000, WS_XN)
    srd(a, 16, 4, 7340032, WS_H)
    srd(a, 24, 6, 3584)
    a("s_lshl_b32 s22, s20, 17")
    a("s_lshl_b32 s23, s21, 17")
    gemm_core(a, "g1", 128, 128, 8, 128, 8, 12, 1024, 1024, 22, 23, False, 4, 64)
    a("v_and_b32 v18, 1, v13")
    a("v_lshrrev_b32 v19, 1, v13")
    a("s_lshl_b32 s22, s20, 7")
    a("v_lshl_add_u32 v20, v18, 6, s22")
    a("v_lshl_add_u32 v20, v15, 2, v20")
    a("v_lshlrev_b32 v21, 1, v20")
    for tn in range(2):
        for g in range(4):
            a(f"buffer_load_dwordx2 v[{128+2*(4*tn+g)}:{129+2*(4*tn+g)}], v21, s[24:27], 0 offen offset:{64*tn+16*g}")
    a("s_lshl_b32 s23, s21, 7")
    a("v_lshl_add_u32 v22, v19, 6, s23")
    a("v_add_u32 v22, v22, v14")
    a("s_movk_i32 s40, 3584")
    a("v_mul_lo_u32 v22, v22, s40")
    a("v_add_u32 v22, v22, v21")
    a(f"v_add_u32 v23, {32*3584}, v22")
    a("s_waitcnt vmcnt(0)")
    for tn in range(2):
        for g in range(4):
            bl = 128 + 2*(4*tn+g)
            a(f"v_lshlrev_b32 v24, 16, v{bl}")
            a(f"v_and_b32 v25, 0xffff0000, v{bl}")
            a(f"v_lshlrev_b32 v26, 16, v{bl+1}")
            a(f"v_and_b32 v27, 0xffff0000, v{bl+1}")
            for tm in range(2):
                c = 64 + 16*(2*tn+tm) + 4*g
                for r in range(4):
                    x = c + r
                    bf16r(a, x, x)
                    a(f"v_add_f32 v{x}, v{x}, v{24+r}")
                    bf16r(a, x, x)
                    a(f"v_mul_f32 v28, v{x}, v{x}")
                    a(f"v_mul_f32 v28, v28, v{x}")
                    a(f"v_fmac_f32 v{x}, 0, v28") if False else None
                    a(f"v_mov_b32 v29, v{x}")
                    a(f"v_fmac_f32 v29, 0x3d372713, v28")
                    a(f"v_mul_f32 v29, 0xc0135761, v29")
                    a(f"v_exp_f32 v29, v29")
                    a("s_nop 0")
                    a(f"v_add_f32 v29, 1.0, v29")
                    a(f"v_rcp_f32 v29, v29")
                    a("s_nop 0")
                    a(f"v_mul_f32 v{x}, v{x}, v29")
                a(f"v_cvt_pk_bf16_f32 v30, v{c}, v{c+1}")
                a(f"v_cvt_pk_bf16_f32 v31, v{c+2}, v{c+3}")
                a(f"buffer_store_dwordx2 v[30:31], v{22+tm}, s[16:19], 0 offen offset:{64*tn+16*g}")
                a("s_nop 1")
    a.label("L_end_mid")
    a("s_endpgm")
    a.label("L_conv")
    a("s_load_dwordx2 s[6:7], s[0:1], %d" % KA_DSKIP)
    a("v_lshrrev_b32 v13, 6, v0")
    a("v_and_b32 v12, 63, v0")
    a("s_nop 0")
    a("v_readfirstlane_b32 s3, v13")
    a("s_lshr_b32 s20, s3, 1")
    a("s_and_b32 s21, s3, 1")
    a("s_lshl_b32 s22, s2, 1")
    a("s_add_u32 s22, s22, s20")
    a("s_waitcnt lgkmcnt(0)")
    srd(a, 8, 4, 512*KR_STRIDE, WS_KR)
    srd(a, 12, 4, 0x200000, WS_XNT)
    srd(a, 16, 4, 0x200000, WS_YAT)
    a("s_lshr_b32 s23, s22, 1")
    a("s_lshl_b32 s23, s23, 2")
    a("s_load_dword s24, s[6:7], s23")
    a("s_mul_i32 s25, s20, 40960")
    a(f"s_mul_i32 s26, s22, {KR_STRIDE}")
    a("v_lshlrev_b32 v3, 4, v12")
    for ci in range(4):
        a(f"s_lshl_b32 s27, s21, 3")
        a(f"s_add_u32 s27, s27, {2*ci}")
        a("s_add_u32 s27, s27, s26")
        a("v_add_u32 v4, s27, v3")
        for j in range(5):
            a(f"buffer_load_dwordx4 v[{32+20*ci+4*j}:{35+20*ci+4*j}], v4, s[8:11], 0 offen offset:{1024*j if j < 4 else 0}" if j < 4 else
              f"buffer_load_dwordx4 v[{32+20*ci+4*j}:{35+20*ci+4*j}], v4, s[8:11], s46 offen") if j < 4 else None
        a("s_movk_i32 s46, 4096")
        a(f"buffer_load_dwordx4 v[{32+20*ci+16}:{35+20*ci+16}], v4, s[8:11], s46 offen")
    a("s_lshl_b32 s27, s22, 12")
    a("s_lshl_b32 s28, s21, 11")
    a("s_add_u32 s27, s27, s28")
    a("v_add_u32 v5, s27, v3")
    a("buffer_load_dwordx4 v[112:115], v5, s[12:15], 0 offen")
    a("buffer_load_dwordx4 v[116:119], v5, s[12:15], 0 offen offset:1024")
    for r in range(4):
        a(f"v_mov_b32 v{120+r}, 0")
    a("s_mul_i32 s28, s21, 1280")
    a("s_add_u32 s28, s28, s25")
    a("s_add_u32 s28, s28, 33280")
    a("v_add_u32 v6, s28, v3")
    a("ds_write_b128 v6, v[120:123]")
    a("v_cmp_gt_u32 vcc, 16, v12")
    a("s_and_saveexec_b64 s[30:31], vcc")
    a("ds_write_b128 v6, v[120:123] offset:1024")
    a("s_mov_b64 exec, s[30:31]")
    a("s_waitcnt vmcnt(0)")
    for ci in range(4):
        a(f"s_lshl_b32 s27, s21, 2")
        a(f"s_add_u32 s27, s27, {ci}")
        a("s_mul_i32 s27, s27, 4160")
        a("s_add_u32 s27, s27, s25")
        a("v_add_u32 v4, s27, v3")
        for j in range(4):
            a(f"ds_write_b128 v4, v[{32+20*ci+4*j}:{35+20*ci+4*j}] offset:{1024*j}")
        a("v_cmp_gt_u32 vcc, 4, v12")
        a("s_and_saveexec_b64 s[30:31], vcc")
        a(f"ds_write_b128 v4, v[{32+20*ci+16}:{35+20*ci+16}] offset:4096")
        a("s_mov_b64 exec, s[30:31]")
    a("s_lshl_b32 s27, s21, 7")
    a("v_add_u32 v7, s27, v12")
    a("v_lshrrev_b32 v8, 2, v7")
    a("v_and_b32 v9, 3, v7")
    a("s_movk_i32 s40, 80")
    a("v_mul_lo_u32 v8, v8, s40")
    a("v_lshl_add_u32 v8, v9, 4, v8")
    a("s_add_u32 s27, s25, %d" % (33280 + 32*80))
    a("v_add_u32 v8, s27, v8")
    a("ds_write_b128 v8, v[112:115]")
    a("ds_write_b128 v8, v[116:119] offset:%d" % (16*80))
    a("s_waitcnt lgkmcnt(0)")
    a("s_barrier")
    a("v_and_b32 v14, 31, v12")
    a("v_lshrrev_b32 v15, 5, v12")
    a("v_and_b32 v16, 7, v14")
    a("v_sub_u32 v16, 7, v16")
    a("s_movk_i32 s40, 4160")
    a("v_mul_lo_u32 v16, v16, s40")
    a("v_lshrrev_b32 v17, 3, v14")
    a("v_lshlrev_b32 v17, 4, v17")
    a("v_sub_u32 v16, v16, v17")
    a("v_lshl_add_u32 v16, v15, 4, v16")
    a("s_lshl_b32 s27, s21, 5")
    a("s_add_u32 s27, s27, s25")
    a("v_add_u32 v16, s27, v16")
    a("s_movk_i32 s40, 80")
    a("v_mul_lo_u32 v17, v14, s40")
    a("v_lshl_add_u32 v17, v15, 4, v17")
    a("s_add_u32 s27, s27, 33280")
    a("v_add_u32 v17, s27, v17")
    for r in range(32):
        a(f"v_mov_b32 v{64+r}, 0")
    for k in range(64):
        f = 20 + 12*(k & 1)
        a(f"ds_read_b128 v[{f}:{f+3}], v16 offset:{4080 - 64*k}")
        a(f"ds_read_b128 v[{f+4}:{f+7}], v17 offset:{(64-k)*80}")
        if k < 32:
            a(f"ds_read_b128 v[{f+8}:{f+11}], v17 offset:{(32-k)*80}")
        a("s_waitcnt lgkmcnt(0)")
        a(f"v_mfma_f32_32x32x16_bf16 v[80:95], v[{f}:{f+3}], v[{f+4}:{f+7}], v[80:95]")
        if k < 32:
            a(f"v_mfma_f32_32x32x16_bf16 v[64:79], v[{f}:{f+3}], v[{f+8}:{f+11}], v[64:79]")
    a("s_nop 15")
    a("s_nop 3")
    a("s_barrier")
    a("s_lshl_b32 s27, s21, 12")
    a("s_add_u32 s27, s27, s25")
    a("v_add_u32 v4, s27, v3")
    a("s_cmp_eq_u32 s21, 0")
    a("s_cbranch_scc0 L_cx1")
    for j in range(4):
        a(f"ds_write_b128 v4, v[{80+4*j}:{83+4*j}] offset:{1024*j}")
    a("s_branch L_cx2")
    a.label("L_cx1")
    for j in range(4):
        a(f"ds_write_b128 v4, v[{64+4*j}:{67+4*j}] offset:{1024*j}")
    for r in range(16):
        a(f"v_mov_b32 v{64+r}, v{80+r}")
    a.label("L_cx2")
    a("s_waitcnt lgkmcnt(0)")
    a("s_barrier")
    a("s_xor_b32 s27, s21, 1")
    a("s_lshl_b32 s27, s27, 12")
    a("s_add_u32 s27, s27, s25")
    a("v_add_u32 v4, s27, v3")
    for j in range(4):
        a(f"ds_read_b128 v[{80+4*j}:{83+4*j}], v4 offset:{1024*j}")
    a("s_movk_i32 s40, 80")
    a("v_mul_lo_u32 v5, v14, s40")
    a("v_lshl_add_u32 v5, v15, 3, v5")
    a("s_mul_i32 s27, s21, 2560")
    a("s_add_u32 s27, s27, s25")
    a("s_add_u32 s27, s27, %d" % (33280 + 32*80))
    a("v_add_u32 v5, s27, v5")
    for g in range(4):
        a(f"ds_read_b64 v[{96+2*g}:{97+2*g}], v5 offset:{16*g}")
    a("s_and_b32 s27, s22, 1")
    a("s_lshl_b32 s27, s27, 4")
    a("s_lshr_b32 s24, s24, s27")
    a("s_lshl_b32 s24, s24, 16")
    a("v_lshlrev_b32 v6, 6, v14")
    a("v_lshl_add_u32 v6, v15, 3, v6")
    a("s_lshl_b32 s27, s22, 12")
    a("s_lshl_b32 s28, s21, 11")
    a("s_add_u32 s27, s27, s28")
    a("v_add_u32 v6, s27, v6")
    a("s_waitcnt lgkmcnt(0)")
    for g in range(4):
        a(f"v_lshlrev_b32 v24, 16, v{96+2*g}")
        a(f"v_and_b32 v25, 0xffff0000, v{96+2*g}")
        a(f"v_lshlrev_b32 v26, 16, v{97+2*g}")
        a(f"v_and_b32 v27, 0xffff0000, v{97+2*g}")
        for r in range(4):
            x = 64 + 4*g + r
            a(f"v_add_f32 v{x}, v{x}, v{80+4*g+r}")
            bf16r(a, x, x)
            a(f"v_mul_f32 v{24+r}, s24, v{24+r}")
            bf16r(a, 24+r, 24+r)
            a(f"v_add_f32 v{x}, v{x}, v{24+r}")
        a(f"v_cvt_pk_bf16_f32 v30, v{64+4*g}, v{65+4*g}")
        a(f"v_cvt_pk_bf16_f32 v31, v{66+4*g}, v{67+4*g}")
        a(f"buffer_store_dwordx2 v[30:31], v6, s[16:19], 0 offen offset:{16*g}")
        a("s_nop 1")
    a("s_endpgm")

def gen_k3(a):
    K = "fin_kernel"
    a(f".globl {K}\n.p2align 8\n.type {K},@function")
    a.label(K)
    a("s_cmp_ge_u32 s2, 256")
    a("s_cbranch_scc1 L_end_fin")
    a("s_load_dwordx2 s[4:5], s[0:1], %d" % KA_WS)
    a("s_load_dwordx2 s[6:7], s[0:1], %d" % KA_B2)
    a("s_load_dwordx2 s[28:29], s[0:1], %d" % KA_U)
    a("s_load_dwordx2 s[30:31], s[0:1], %d" % KA_OUT)
    stamp(a, 0)
    a("s_and_b32 s21, s2, 7")
    a("s_lshr_b32 s40, s2, 3")
    a("s_and_b32 s20, s40, 7")
    a("s_lshr_b32 s40, s40, 3")
    a("s_lshl_b32 s40, s40, 3")
    a("s_add_u32 s21, s21, s40")
    a("s_waitcnt lgkmcnt(0)")
    srd(a, 8, 4, 1835008, WS_W2T)
    srd(a, 12, 4, 7340032, WS_H)
    srd(a, 16, 4, 0x200000, WS_YAT)
    srd(a, 24, 6, 1024)
    srd(a, 32, 28, 0x200000)
    srd(a, 36, 30, 0x200000)
    a("s_mul_i32 s22, s20, %d" % (64*3584))
    a("s_mul_i32 s23, s21, %d" % (64*3584))
    gemm_core(a, "g2", 64, 64, 14, 256, 8, 12, 3584, 3584, 22, 23, True, 4, 64)
    stamp(a, 3)
    a("s_barrier")
    a("v_readfirstlane_b32 s3, v13")
    a("v_lshlrev_b32 v3, 4, v12")
    for qd in range(4):
        lab = a.newlabel("L_rq")
        a(f"s_cmp_eq_u32 s3, {qd}")
        a(f"s_cbranch_scc1 {lab}")
        a(f"s_sub_u32 s40, s3, {qd+1}")
        a("s_and_b32 s40, s40, 3")
        a("s_lshl_b32 s40, s40, 12")
        a(f"s_add_u32 s40, s40, {qd*12288}")
        a("v_add_u32 v4, s40, v3")
        for j in range(4):
            a(f"ds_write_b128 v4, v[{64+16*qd+4*j}:{67+16*qd+4*j}] offset:{1024*j}")
        a.label(lab)
    a("s_waitcnt lgkmcnt(0)")
    a("s_barrier")
    for qd in range(4):
        lab = a.newlabel("L_mq")
        a(f"s_cmp_lg_u32 s3, {qd}")
        a(f"s_cbranch_scc1 {lab}")
        for r in range(16):
            a(f"v_mov_b32 v{48+r}, v{64+16*qd+r}")
        a.label(lab)
    a("s_mul_i32 s40, s3, 12288")
    a("v_add_u32 v4, s40, v3")
    for sl in range(3):
        for j in range(4):
            a(f"ds_read_b128 v[{64+16*sl+4*j}:{67+16*sl+4*j}], v4 offset:{4096*sl+1024*j}")
    a("s_lshr_b32 s40, s3, 1")
    a("s_and_b32 s41, s3, 1")
    a("s_lshl_b32 s42, s20, 6")
    a("s_lshl_b32 s40, s40, 5")
    a("s_add_u32 s42, s42, s40")
    a("v_lshl_add_u32 v20, v15, 2, s42")
    a("v_lshlrev_b32 v21, 1, v20")
    a("s_lshl_b32 s43, s21, 6")
    a("s_lshl_b32 s41, s41, 5")
    a("s_add_u32 s43, s43, s41")
    a("v_add_u32 v22, s43, v14")
    a("v_lshl_add_u32 v23, v22, 10, v21")
    a("v_lshlrev_b32 v24, 12, v20")
    a("v_lshl_add_u32 v24, v22, 1, v24")
    for g in range(4):
        a(f"buffer_load_dwordx2 v[{112+2*g}:{113+2*g}], v21, s[24:27], 0 offen offset:{16*g}")
        a(f"buffer_load_dwordx2 v[{120+2*g}:{121+2*g}], v23, s[32:35], 0 offen offset:{16*g}")
    for g in range(4):
        for r in range(4):
            a(f"s_mov_b32 s44, {(8*g+r)*4096}")
            a(f"buffer_load_ushort v{128+4*g+r}, v24, s[16:19], s44 offen")
    a("s_waitcnt vmcnt(0) lgkmcnt(0)")
    for g in range(4):
        for half in range(2):
            a(f"v_lshlrev_b32 v{26+2*half}, 16, v{112+2*g+half}")
            a(f"v_and_b32 v{27+2*half}, 0xffff0000, v{112+2*g+half}")
            a(f"v_lshlrev_b32 v{30+2*half}, 16, v{120+2*g+half}")
            a(f"v_and_b32 v{31+2*half}, 0xffff0000, v{120+2*g+half}")
        for r in range(4):
            x = 48 + 4*g + r
            a(f"v_add_f32 v{x}, v{x}, v{64+4*g+r}")
            a(f"v_add_f32 v{x}, v{x}, v{80+4*g+r}")
            a(f"v_add_f32 v{x}, v{x}, v{96+4*g+r}")
            bf16r(a, x, x)
            a(f"v_add_f32 v{x}, v{x}, v{26+r}")
            bf16r(a, x, x)
            a(f"v_lshlrev_b32 v34, 16, v{128+4*g+r}")
            a(f"v_add_f32 v34, v34, v{30+r}")
            bf16r(a, 34, 34)
            a(f"v_add_f32 v{x}, v{x}, v34")
        a(f"v_cvt_pk_bf16_f32 v36, v{48+4*g}, v{49+4*g}")
        a(f"v_cvt_pk_bf16_f32 v37, v{50+4*g}, v{51+4*g}")
        a(f"buffer_store_dwordx2 v[36:37], v23, s[36:39], 0 offen offset:{16*g}")
        a("s_nop 1")
    stamp(a, 4)
    stamp_out(a, 5, 100)
    a.label("L_end_fin")
    a("s_endpgm")

def kd(name, vgpr, sgpr=102, accum=None):
    accum = accum or ((vgpr + 3) // 4 * 4)
    return f""".amdhsa_kernel {name}
  .amdhsa_next_free_vgpr {vgpr}
  .amdhsa_next_free_sgpr {sgpr}
  .amdhsa_accum_offset {accum}
  .amdhsa_group_segment_fixed_size 0
  .amdhsa_kernarg_size 120
  .amdhsa_user_sgpr_count 2
  .amdhsa_user_sgpr_kernarg_segment_ptr 1
  .amdhsa_system_sgpr_workgroup_id_x 1
.end_amdhsa_kernel
"""

def main():
    a = Asm()
    hdr = "; generated by dev/gen.py (own generator)\n"
    hdr += "; @launch kernel=prep_kernel grid=(880,1,1) block=(256,1,1) lds=20480\n"
    hdr += "; @launch kernel=mid_kernel grid=(512,1,1) block=(256,1,1) lds=81920\n"
    hdr += "; @launch kernel=fin_kernel grid=(256,1,1) block=(256,1,1) lds=69632\n"
    hdr += '.amdgcn_target "amdgcn-amd-amdhsa--gfx950"\n.text\n'
    gen_prep(a)
    gen_k2(a)
    gen_k3(a)
    txt = hdr + a.text() + '.section .rodata,"a"\n.p2align 6\n' + kd("prep_kernel", 120) + kd("mid_kernel", 256) + kd("fin_kernel", 256)
    open(f"cdna_kernels/{NAME}.s", "w").write(txt)

import os
STAMPS = bool(os.environ.get('STAMPS'))
main()
```

```python
import sys
sys.path.insert(0, "dev")
from asmlib import Asm, vr, sr, ar

NAME = "parallel_sum__ssm_conv_s4d__dense_activation_gelu__prompt"
WS_XN   = 0x000000
WS_XNT  = 0x200000
WS_KR   = 0x400000; KR_STRIDE = 4224
WS_W1T  = 0x680000
WS_W2T  = 0x880000
WS_H    = 0xA80000
WS_YAT  = 0x1200000

KA_U, KA_LOGA, KA_AIM, KA_CR, KA_CI, KA_LOGDT, KA_DSKIP, KA_X, KA_W1, KA_B1, KA_W2, KA_B2, KA_OUT, KA_DBG, KA_WS = [8*i for i in range(15)]

def srd(a, s, ptr, size, add=0):
    if add:
        a(f"s_add_u32 s{s}, s{ptr}, {add}")
        a(f"s_addc_u32 s{s+1}, s{ptr+1}, 0")
    else:
        a(f"s_mov_b32 s{s}, s{ptr}")
        a(f"s_mov_b32 s{s+1}, s{ptr+1}")
    a(f"s_mov_b32 s{s+2}, {size}")
    a(f"s_mov_b32 s{s+3}, 0x00020000")

STAMPS = False
def stamp(a, idx):
    if not STAMPS: return
    a(f"s_memtime s[{70+2*idx}:{71+2*idx}]")
    a("s_waitcnt lgkmcnt(0)")
def stamp_out(a, n, wg=0):
    if not STAMPS: return
    lab = a.newlabel("L_st")
    a(f"s_cmp_lg_u32 s2, {wg}")
    a(f"s_cbranch_scc1 {lab}")
    a("s_load_dwordx2 s[92:93], s[0:1], %d" % KA_DBG)
    a("s_waitcnt lgkmcnt(0)")
    a("v_lshrrev_b32 v1, 6, v0")
    a("v_lshlrev_b32 v1, 6, v1")
    a("v_mov_b32 v3, s93")
    a("v_add_co_u32 v2, vcc, s92, v1")
    a("s_nop 1")
    a("v_addc_co_u32 v3, vcc, 0, v3, vcc")
    for i in range(n):
        a(f"v_mov_b32 v4, s{70+2*i}")
        a(f"global_store_dword v[2:3], v4, off offset:{4*i}")
        a("s_nop 2")
    a.label(lab)

def bf16r(a, d, s):
    a(f"v_cvt_pk_bf16_f32 v{d}, v{s}, v{s}")
    a(f"v_lshlrev_b32 v{d}, 16, v{d}")

def transpose_out(a, lds_row_stride, v_ldsaddr, srd_dst, v_dst, dst_row_stride, vt=32):
    a("s_mov_b32 s44, 0x05040100")
    a("s_mov_b32 s45, 0x07060302")
    for j in range(16):
        a(f"ds_read_b32 v{vt+j}, v{v_ldsaddr} offset:{j*lds_row_stride}")
    a("s_waitcnt lgkmcnt(0)")
    for j in range(8):
        a(f"v_perm_b32 v{vt+16+j}, v{vt+2*j+1}, v{vt+2*j}, s44")
        a(f"v_perm_b32 v{vt+24+j}, v{vt+2*j+1}, v{vt+2*j}, s45")
    a(f"buffer_store_dwordx4 v[{vt+16}:{vt+19}], v{v_dst}, s[{srd_dst}:{srd_dst+3}], 0 offen")
    a(f"buffer_store_dwordx4 v[{vt+20}:{vt+23}], v{v_dst}, s[{srd_dst}:{srd_dst+3}], 0 offen offset:16")
    a(f"v_add_u32 v{v_dst}, {dst_row_stride}, v{v_dst}")
    a(f"buffer_store_dwordx4 v[{vt+24}:{vt+27}], v{v_dst}, s[{srd_dst}:{srd_dst+3}], 0 offen")
    a(f"buffer_store_dwordx4 v[{vt+28}:{vt+31}], v{v_dst}, s[{srd_dst}:{srd_dst+3}], 0 offen offset:16")

def wave_reduce4(a, regs, tmp):
    for x in (1, 2, 4, 8, 16):
        for r, t in zip(regs, tmp):
            a(f"ds_swizzle_b32 v{t}, v{r} offset:{(x << 10) | 0x1f}")
        a("s_waitcnt lgkmcnt(0)")
        for r, t in zip(regs, tmp):
            a(f"v_add_f32 v{r}, v{r}, v{t}")
    a("s_nop 1")
    for i, r in enumerate(regs):
        a(f"v_readlane_b32 s{60+2*i}, v{r}, 0")
        a(f"v_readlane_b32 s{61+2*i}, v{r}, 32")
    a("s_nop 1")
    for i, r in enumerate(regs):
        a(f"v_mov_b32 v{r}, s{60+2*i}")
        a(f"v_add_f32 v{r}, s{61+2*i}, v{r}")

def gen_prep(a):
    K = "prep_kernel"
    a(f".globl {K}\n.p2align 8\n.type {K},@function")
    a.label(K)
    a("s_load_dwordx2 s[4:5], s[0:1], %d" % KA_WS)
    a("s_cmp_lt_u32 s2, 512")
    a("s_cbranch_scc1 L_kgen")
    a("s_cmp_lt_u32 s2, 640")
    a("s_cbranch_scc1 L_ln")
    a("s_cmp_lt_u32 s2, 768")
    a("s_cbranch_scc1 L_w1")
    a("s_cmp_lt_u32 s2, 880")
    a("s_cbranch_scc1 L_w2")
    a("s_endpgm")
    a.label("L_ln")
    if "ln" in SKIP: a("s_endpgm")
    a("s_load_dwordx2 s[6:7], s[0:1], %d" % KA_U)
    a("s_sub_u32 s3, s2, 512")
    a("v_and_b32 v1, 63, v0")
    a("v_lshrrev_b32 v2, 6, v0")
    a("s_lshl_b32 s20, s3, 14")
    a("v_lshlrev_b32 v3, 12, v2")
    a("v_lshl_add_u32 v3, v1, 4, v3")
    a("v_add_u32 v4, s20, v3")
    a("s_waitcnt lgkmcnt(0)")
    srd(a, 8, 6, 0x200000)
    srd(a, 12, 4, 0x200000, WS_XN)
    srd(a, 16, 4, 0x200000, WS_XNT)
    for j in range(4):
        a(f"buffer_load_dwordx4 v[{8+4*j}:{11+4*j}], v4, s[8:11], 0 offen offset:{1024*j}")
    a("s_waitcnt vmcnt(0)")
    for j in range(4):
        for e in range(4):
            a(f"v_lshlrev_b32 v{32+8*j+2*e}, 16, v{8+4*j+e}")
            a(f"v_and_b32 v{33+8*j+2*e}, 0xffff0000, v{8+4*j+e}")
    for j in range(4):
        a(f"v_add_f32 v{64+j}, v{32+8*j}, v{33+8*j}")
        for e in range(2, 8):
            a(f"v_add_f32 v{64+j}, v{64+j}, v{32+8*j+e}")
    wave_reduce4(a, [64, 65, 66, 67], [68, 69, 70, 71])
    for j in range(4):
        a(f"v_mul_f32 v{64+j}, 0x3b000000, v{64+j}")
    for j in range(4):
        for e in range(8):
            a(f"v_sub_f32 v76, v{32+8*j+e}, v{64+j}")
            if e == 0:
                a(f"v_mul_f32 v{72+j}, v76, v76")
            else:
                a(f"v_fmac_f32 v{72+j}, v76, v76")
    wave_reduce4(a, [72, 73, 74, 75], [68, 69, 70, 71])
    for j in range(4):
        a(f"v_mul_f32 v{72+j}, 0x3b000000, v{72+j}")
        bf16r(a, 64+j, 64+j)
        bf16r(a, 72+j, 72+j)
        a(f"v_add_f32 v{72+j}, 0x3727c5ac, v{72+j}")
        bf16r(a, 72+j, 72+j)
        a(f"v_sqrt_f32 v{72+j}, v{72+j}")
        a("s_nop 0")
        bf16r(a, 72+j, 72+j)
        a(f"v_rcp_f32 v{76+j}, v{72+j}")
    a("s_nop 0")
    for j in range(4):
        for e in range(8):
            r = 32+8*j+e
            a(f"v_sub_f32 v{r}, v{r}, v{64+j}")
            bf16r(a, r, r)
            a(f"v_mul_f32 v80, v{r}, v{76+j}")
            a(f"v_fma_f32 v81, -v80, v{72+j}, v{r}")
            a(f"v_fma_f32 v{r}, v81, v{76+j}, v80")
        for e in range(4):
            a(f"v_cvt_pk_bf16_f32 v{8+4*j+e}, v{32+8*j+2*e}, v{33+8*j+2*e}")
    for j in range(4):
        a(f"buffer_store_dwordx4 v[{8+4*j}:{11+4*j}], v4, s[12:15], 0 offen offset:{1024*j}")
        a(f"ds_write_b128 v3, v[{8+4*j}:{11+4*j}] offset:{1024*j}")
    a("s_waitcnt lgkmcnt(0)")
    a("s_barrier")
    a("v_lshlrev_b32 v5, 2, v0")
    a("v_lshlrev_b32 v6, 13, v0")
    a("s_lshl_b32 s20, s3, 5")
    a("v_add_u32 v6, s20, v6")
    transpose_out(a, 1024, 5, 16, 6, 4096)
    a("s_endpgm")
    a.label("L_w1")
    if "w" in SKIP: a("s_endpgm")
    a("s_load_dwordx2 s[6:7], s[0:1], %d" % KA_W1)
    a("s_sub_u32 s3, s2, 640")
    a("s_and_b32 s21, s3, 7")
    a("s_lshr_b32 s20, s3, 3")
    a("s_cmp_eq_u32 s21, 7")
    a("s_cbranch_scc1 L_end_prep")
    a("s_lshl_b32 s20, s20, 5")
    a("s_lshl_b32 s21, s21, 8")
    a("s_movk_i32 s22, 3584")
    a("s_movk_i32 s23, 1024")
    a("s_waitcnt lgkmcnt(0)")
    srd(a, 8, 6, 1835008)
    srd(a, 12, 4, 1835008, WS_W1T)
    a("s_branch L_wt")
    a.label("L_w2")
    if "w" in SKIP: a("s_endpgm")
    a("s_load_dwordx2 s[6:7], s[0:1], %d" % KA_W2)
    a("s_sub_u32 s3, s2, 768")
    a("s_and_b32 s21, s3, 1")
    a("s_lshr_b32 s20, s3, 1")
    a("s_lshl_b32 s20, s20, 5")
    a("s_lshl_b32 s21, s21, 8")
    a("s_movk_i32 s22, 1024")
    a("s_movk_i32 s23, 3584")
    a("s_waitcnt lgkmcnt(0)")
    srd(a, 8, 6, 1835008)
    srd(a, 12, 4, 1835008, WS_W2T)
    a.label("L_wt")
    a("v_lshrrev_b32 v1, 5, v0")
    a("v_and_b32 v2, 31, v0")
    a("v_lshlrev_b32 v2, 4, v2")
    a("v_add_u32 v3, s20, v1")
    a("v_mul_lo_u32 v3, v3, s22")
    a("s_lshl_b32 s24, s21, 1")
    a("v_add3_u32 v3, v3, v2, s24")
    a("s_lshl_b32 s25, s22, 3")
    a("v_lshl_add_u32 v4, v1, 9, v2")
    for i in range(4):
        a(f"buffer_load_dwordx4 v[{8+4*i}:{11+4*i}], v3, s[8:11], 0 offen")
        if i < 3:
            a("v_add_u32 v3, s25, v3")
    a("s_waitcnt vmcnt(0)")
    for i in range(4):
        a(f"ds_write_b128 v4, v[{8+4*i}:{11+4*i}] offset:{4096*i}")
    a("s_waitcnt lgkmcnt(0)")
    a("s_barrier")
    a("v_and_b32 v1, 127, v0")
    a("v_lshrrev_b32 v2, 7, v0")
    a("v_lshlrev_b32 v5, 13, v2")
    a("v_lshl_add_u32 v5, v1, 2, v5")
    a("v_lshl_add_u32 v6, v1, 1, s21")
    a("v_mul_lo_u32 v6, v6, s23")
    a("s_lshl_b32 s24, s20, 1")
    a("v_lshlrev_b32 v7, 5, v2")
    a("v_add3_u32 v6, v6, v7, s24")
    a("s_mov_b32 s44, 0x05040100")
    a("s_mov_b32 s45, 0x07060302")
    vt = 32
    for j in range(16):
        a(f"ds_read_b32 v{vt+j}, v5 offset:{j*512}")
    a("s_waitcnt lgkmcnt(0)")
    for j in range(8):
        a(f"v_perm_b32 v{vt+16+j}, v{vt+2*j+1}, v{vt+2*j}, s44")
        a(f"v_perm_b32 v{vt+24+j}, v{vt+2*j+1}, v{vt+2*j}, s45")
    a(f"buffer_store_dwordx4 v[{vt+16}:{vt+19}], v6, s[12:15], 0 offen")
    a(f"buffer_store_dwordx4 v[{vt+20}:{vt+23}], v6, s[12:15], 0 offen offset:16")
    a(f"v_add_u32 v6, s23, v6")
    a(f"buffer_store_dwordx4 v[{vt+24}:{vt+27}], v6, s[12:15], 0 offen")
    a(f"buffer_store_dwordx4 v[{vt+28}:{vt+31}], v6, s[12:15], 0 offen offset:16")
    a.label("L_end_prep")
    a("s_endpgm")
    a.label("L_kgen")
    if "kgen" in SKIP: a("s_endpgm")
    a("s_load_dwordx4 s[8:11], s[0:1], %d" % KA_LOGA)
    a("s_load_dwordx4 s[12:15], s[0:1], %d" % KA_CR)
    a("s_load_dwordx2 s[16:17], s[0:1], %d" % KA_LOGDT)
    a("v_lshrrev_b32 v2, 6, v0")
    a("v_and_b32 v1, 63, v0")
    a("s_nop 0")
    a("v_readfirstlane_b32 s3, v2")
    a("s_waitcnt lgkmcnt(0)")
    a("s_lshr_b32 s18, s2, 1")
    a("s_lshl_b32 s18, s18, 2")
    a("s_load_dword s19, s[16:17], s18")
    srd(a, 20, 8, 131072)
    srd(a, 24, 10, 131072)
    srd(a, 28, 12, 131072)
    srd(a, 32, 14, 131072)
    srd(a, 36, 4, 512*KR_STRIDE, WS_KR)
    a("s_cmp_ge_u32 s3, 2")
    a("s_cbranch_scc1 L_kg_main")
    a("s_lshl_b32 s40, s2, 8")
    a("v_lshl_add_u32 v3, v0, 1, s40")
    a("buffer_load_ushort v4, v3, s[20:23], 0 offen")
    a("buffer_load_ushort v5, v3, s[24:27], 0 offen")
    a("buffer_load_ushort v6, v3, s[28:31], 0 offen")
    a("buffer_load_ushort v7, v3, s[32:35], 0 offen")
    a("s_waitcnt lgkmcnt(0)")
    a("s_and_b32 s41, s2, 1")
    a("s_lshl_b32 s41, s41, 4")
    a("s_lshr_b32 s19, s19, s41")
    a("s_lshl_b32 s19, s19, 16")
    a("v_mov_b32 v8, s19")
    a("v_mul_f32 v8, 0x3fb8aa3b, v8")
    a("v_exp_f32 v8, v8")
    a("s_nop 0")
    bf16r(a, 8, 8)
    a("s_waitcnt vmcnt(0)")
    for r in (4, 5, 6, 7):
        a(f"v_lshlrev_b32 v{r}, 16, v{r}")
    a("v_mul_f32 v4, 0x3fb8aa3b, v4")
    a("v_exp_f32 v4, v4")
    a("s_nop 0")
    bf16r(a, 4, 4)
    a("v_mul_f32 v4, v4, v8")
    a("v_mul_f32 v12, 0xbfb8aa3b, v4")
    a("v_mul_f32 v5, v5, v8")
    a("v_mul_f32 v13, 0x3e22f983, v5")
    a("v_mul_f32 v6, v6, v8")
    a("v_mul_f32 v7, v7, v8")
    a("v_add_f32 v14, v6, v6")
    a("v_add_f32 v15, v7, v7")
    a("v_lshlrev_b32 v3, 4, v0")
    a("ds_write_b128 v3, v[12:15]")
    a.label("L_kg_main")
    a("s_waitcnt lgkmcnt(0)")
    a("s_barrier")
    a("v_and_b32 v3, 15, v1")
    a("v_lshrrev_b32 v4, 4, v1")
    a("v_cvt_f32_u32 v20, v3")
    a("v_mul_f32 v21, 0x41800000, v20")
    a("v_mul_f32 v22, 0x42000000, v20")
    a("v_add_f32 v22, 0x43800000, v22")
    a("s_lshl_b32 s40, s3, 9")
    a("v_lshl_add_u32 v23, v4, 4, s40")
    for r in range(16):
        a(f"v_mov_b32 v{40+r}, 0")
    a("ds_read_b128 v[24:27], v23 offset:0")
    for g in range(8):
        p = 24 + 4*(g & 1)
        R = 56 + 24*(g & 1)
        B = [R + 2*w for w in range(4)]
        X = [R + 8 + 2*w for w in range(4)]
        Rr = [R + 16 + 2*w for w in range(4)]
        T = 104
        if g < 7:
            pn = 24 + 4*((g+1) & 1)
            a(f"ds_read_b128 v[{pn}:{pn+3}], v23 offset:{64*(g+1)}")
            a("s_waitcnt lgkmcnt(1)")
        else:
            a("s_waitcnt lgkmcnt(0)")
        pos = [20, 21, 22]
        for j in range(3):
            a(f"v_mul_f32 v{T+4*j}, v{p}, v{pos[j]}")
            a(f"v_mul_f32 v{T+4*j+1}, v{p+1}, v{pos[j]}")
        for j in range(3):
            a(f"v_exp_f32 v{T+4*j}, v{T+4*j}")
            a(f"v_fract_f32 v{T+4*j+1}, v{T+4*j+1}")
        for j in range(3):
            a(f"v_cos_f32 v{T+4*j+2}, v{T+4*j+1}")
            a(f"v_sin_f32 v{T+4*j+3}, v{T+4*j+1}")
        dst = [B[0], X[0], X[1]]
        for j in (1, 0, 2):
            a(f"v_mul_f32 v{dst[j]}, v{T+4*j}, v{T+4*j+2}")
            a(f"v_mul_f32 v{dst[j]+1}, v{T+4*j}, v{T+4*j+3}")
        def sq(d, s):
            a(f"v_mul_f32 v{T+12}, v{s+1}, v{s+1}")
            a(f"v_mul_f32 v{T+13}, v{s}, v{s+1}")
            a(f"v_fma_f32 v{d}, v{s}, v{s}, -v{T+12}")
            a(f"v_add_f32 v{d+1}, v{T+13}, v{T+13}")
        def cmul(d, x):
            a(f"v_mul_f32 v{T+14}, v{x+1}, v{p+3}")
            a(f"v_mul_f32 v{T+15}, v{x+1}, v{p+2}")
            a(f"v_fma_f32 v{d}, v{x}, v{p+2}, -v{T+14}")
            a(f"v_fma_f32 v{d+1}, -v{x}, v{p+3}, -v{T+15}")
        def mf(w, part):
            a(f"v_mfma_f32_16x16x4_f32 v[{40+4*w}:{43+4*w}], v{Rr[w]+part}, v{B[w]+part}, v[{40+4*w}:{43+4*w}]")
        cmul(Rr[0], X[0])
        sq(B[1], B[0])
        mf(0, 0)
        cmul(Rr[1], X[1])
        sq(X[2], X[1])
        mf(0, 1)
        sq(B[2], B[1])
        mf(1, 0)
        cmul(Rr[2], X[2])
        sq(X[3], X[2])
        mf(1, 1)
        sq(B[3], B[2])
        mf(2, 0)
        cmul(Rr[3], X[3])
        mf(2, 1)
        a("s_nop 1")
        mf(3, 0)
        mf(3, 1)
    a("s_nop 15")
    a("v_lshlrev_b32 v5, 8, v4")
    a("v_lshl_add_u32 v5, v3, 2, v5")
    a("s_lshl_b32 s40, s3, 12")
    a("v_add_u32 v5, s40, v5")
    for w in range(4):
        for r in range(4):
            a(f"ds_write_b32 v5, v{40+4*w+r} offset:{4096+1024*w+64*r}")
    a("s_waitcnt lgkmcnt(0)")
    a("s_barrier")
    a("v_lshlrev_b32 v5, 4, v0")
    for w in range(4):
        a(f"ds_read_b128 v[{24+4*w}:{27+4*w}], v5 offset:{4096+4096*w}")
    a("s_waitcnt lgkmcnt(0)")
    for r in range(4):
        a(f"v_add_f32 v{24+r}, v{24+r}, v{28+r}")
        a(f"v_add_f32 v{32+r}, v{32+r}, v{36+r}")
    for r in range(4):
        a(f"v_add_f32 v{24+r}, v{24+r}, v{32+r}")
    a("ds_write_b128 v5, v[24:27] offset:4096")
    a("s_waitcnt lgkmcnt(0)")
    a("s_barrier")
    a("v_lshlrev_b32 v3, 3, v0")
    a("v_sub_u32 v3, 2047, v3")
    a("v_mov_b32 v4, 0")
    for thr in (256, 512, 1024):
        a(f"v_cmp_le_u32 vcc, {thr}, v3")
        a("s_nop 1")
        a("v_addc_co_u32 v4, vcc, 0, v4, vcc")
    a("v_lshlrev_b32 v5, v4, 1")
    a("v_lshrrev_b32 v5, 1, v5")
    a("v_cmp_ne_u32 vcc, 0, v4")
    a("s_nop 1")
    a("v_cndmask_b32 v6, 0, 1, vcc")
    a("v_sub_u32 v5, v5, v6")
    a("v_lshlrev_b32 v7, 7, v6")
    a("v_lshlrev_b32 v8, 8, v4")
    a("v_sub_u32 v8, v8, v7")
    for e in range(8):
        a(f"v_subrev_u32 v9, {e}, v3")
        a("v_lshrrev_b32 v10, v4, v9")
        a("v_and_b32 v10, v10, v6")
        a("v_add3_u32 v10, v10, v9, v5")
        a("v_lshrrev_b32 v10, v4, v10")
        a("v_add_u32 v10, v10, v8")
        a("v_lshlrev_b32 v10, 2, v10")
        a(f"ds_read_b32 v{24+e}, v10 offset:4096")
    a("s_waitcnt lgkmcnt(0)")
    for e in range(4):
        a(f"v_cvt_pk_bf16_f32 v{32+e}, v{24+2*e}, v{25+2*e}")
    a(f"s_mul_i32 s40, s2, {KR_STRIDE}")
    a("v_lshl_add_u32 v5, v0, 4, s40")
    a("buffer_store_dwordx4 v[32:35], v5, s[36:39], 0 offen")
    a("v_cmp_gt_u32 vcc, 8, v0")
    a("s_and_saveexec_b64 s[42:43], vcc")
    a("s_cbranch_execz L_kg_end")
    for e in range(4):
        a(f"v_mov_b32 v{36+e}, 0")
    a("v_add_u32 v5, 4096, v5")
    a("buffer_store_dwordx4 v[36:39], v5, s[36:39], 0 offen")
    a.label("L_kg_end")
    a("s_endpgm")


def gemm_core(a, tag, RA, RB, nsteps, KS, srdA, srdB, strideA, strideB, sA0, sB0, splitk, depth, vbase_acc, lds0=0):
    RS = KS + 16
    cpr = KS // 16
    rows_per_pass = 256 // cpr
    nA = RA // rows_per_pass; nB = RB // rows_per_pass; nch = nA + nB
    stage_bytes = (RA + RB) * RS
    VS = 128
    sh = {8: 3, 16: 4}[cpr]
    a(f"v_lshrrev_b32 v1, {sh}, v0")
    a(f"v_and_b32 v2, {cpr-1}, v0")
    a("v_lshlrev_b32 v2, 4, v2")
    a(f"s_mov_b32 s40, {strideA}")
    a("v_mul_lo_u32 v3, v1, s40")
    a(f"v_add3_u32 v3, v3, v2, s{sA0}")
    a(f"s_mov_b32 s40, {strideB}")
    a("v_mul_lo_u32 v4, v1, s40")
    a(f"v_add3_u32 v4, v4, v2, s{sB0}")
    a(f"s_movk_i32 s40, {RS}")
    a("v_mul_lo_u32 v5, v1, s40")
    a("v_add_u32 v5, v5, v2")
    if lds0: a(f"v_add_u32 v5, {lds0}, v5")
    for i in range(1, max(nA, nB)):
        if i < nA:
            a(f"v_add_u32 v{6+i-1}, {rows_per_pass*i*strideA}, v3")
        if i < nB:
            a(f"v_add_u32 v{9+i-1}, {rows_per_pass*i*strideB}, v4")
    offA = [3] + [6+i for i in range(nA-1)]
    offB = [4] + [9+i for i in range(nB-1)]
    def issue(step):
        slot = step % depth
        a(f"s_movk_i32 s41, {step*KS}")
        base = VS + slot * nch * 4
        for i in range(nA):
            a(f"buffer_load_dwordx4 v[{base+4*i}:{base+4*i+3}], v{offA[i]}, s[{srdA}:{srdA+3}], s41 offen")
        for i in range(nB):
            b = base + 4*(nA+i)
            a(f"buffer_load_dwordx4 v[{b}:{b+3}], v{offB[i]}, s[{srdB}:{srdB+3}], s41 offen")
    def lds_write(step):
        slot = step % depth
        base = VS + slot * nch * 4
        vw = 5 if (step & 1) == 0 else 56
        for i in range(nA):
            a(f"ds_write_b128 v{vw}, v[{base+4*i}:{base+4*i+3}] offset:{rows_per_pass*i*RS}")
        for i in range(nB):
            b = base + 4*(nA+i)
            a(f"ds_write_b128 v{vw}, v[{b}:{b+3}] offset:{RA*RS + rows_per_pass*i*RS}")
    a("v_and_b32 v12, 63, v0")
    a("v_lshrrev_b32 v13, 6, v0")
    a("v_and_b32 v14, 31, v12")
    a("v_lshrrev_b32 v15, 5, v12")
    a("v_mul_lo_u32 v16, v14, s40")
    a("v_lshl_add_u32 v16, v15, 4, v16")
    if lds0: a(f"v_add_u32 v16, {lds0}, v16")
    if splitk:
        a(f"s_movk_i32 s42, {KS//4}")
        a("v_mul_lo_u32 v18, v13, s42")
        a("v_add_u32 v16, v16, v18")
        a(f"v_add_u32 v17, {RA*RS}, v16")
        S = KS // 128
    else:
        a("v_and_b32 v18, 1, v13")
        a("v_lshrrev_b32 v19, 1, v13")
        a(f"s_movk_i32 s42, {64*RS}")
        a("v_mul_lo_u32 v18, v18, s42")
        a("v_mul_lo_u32 v19, v19, s42")
        a(f"v_add_u32 v17, {RA*RS}, v16")
        a("v_add_u32 v17, v17, v19")
        a("v_add_u32 v16, v16, v18")
        S = KS // 32
    a(f"v_add_u32 v56, {stage_bytes}, v5")
    a(f"v_add_u32 v57, {stage_bytes}, v16")
    a(f"v_add_u32 v58, {stage_bytes}, v17")
    for p in range(min(depth, nsteps)):
        issue(p)
    for r in range(64):
        a(f"v_mov_b32 v{vbase_acc+r}, 0")
    a(f"s_waitcnt vmcnt({(min(depth, nsteps)-1)*nch})")
    lds_write(0)
    a("s_waitcnt lgkmcnt(0)")
    if depth < nsteps:
        issue(depth)
    a("s_barrier")
    stamp(a, 1)
    def reads(k, s_):
        vA, vB = (16, 17) if (k & 1) == 0 else (57, 58)
        f = 20 + 16 * (s_ & 1)
        a(f"ds_read_b128 v[{f}:{f+3}], v{vA} offset:{s_*32}")
        a(f"ds_read_b128 v[{f+4}:{f+7}], v{vA} offset:{s_*32 + 32*RS}")
        a(f"ds_read_b128 v[{f+8}:{f+11}], v{vB} offset:{s_*32}")
        a(f"ds_read_b128 v[{f+12}:{f+15}], v{vB} offset:{s_*32 + 32*RS}")
    def mfmas(s_):
        f = 20 + 16 * (s_ & 1)
        for tn in range(2):
            for tm in range(2):
                c = vbase_acc + 16*(2*tn+tm)
                a(f"v_mfma_f32_32x32x16_bf16 v[{c}:{c+15}], v[{f+4*tn}:{f+4*tn+3}], v[{f+8+4*tm}:{f+8+4*tm+3}], v[{c}:{c+15}]")
    for k in range(nsteps):
        more = k + 1 < nsteps
        if k == nsteps // 2: stamp(a, 2)
        reads(k, 0)
        if S > 1: reads(k, 1)
        wrote = False
        for s_ in range(S):
            pend = 4 if s_ + 1 < S else 0
            if wrote: pend += nch
            a(f"s_waitcnt lgkmcnt({pend})")
            mfmas(s_)
            if s_ + 2 < S:
                reads(k, s_ + 2)
            if more and not wrote and s_ + 2 >= S and (s_ == S - 2 or S == 1):
                outstanding = min(depth, nsteps - 1 - k)
                a(f"s_waitcnt vmcnt({(outstanding-1)*nch})")
                lds_write(k + 1)
                wrote = True
        if more:
            a("s_waitcnt lgkmcnt(0)")
            if k + 1 + depth < nsteps:
                issue(k + 1 + depth)
            a("s_barrier")
    a("s_nop 15")
    a("s_nop 3")

def gen_k2(a):
    K = "mid_kernel"
    a(f".globl {K}\n.p2align 8\n.type {K},@function")
    a.label(K)
    if "mid" in SKIP: a("s_endpgm")
    a("s_load_dwordx2 s[4:5], s[0:1], %d" % KA_WS)
    a("s_cmp_lt_u32 s2, 256")
    a("s_cbranch_scc1 L_conv")
    a("s_cmp_lt_u32 s2, 512")
    a("s_cbranch_scc1 L_g1")
    a("s_endpgm")
    a.label("L_g1")
    a("s_sub_u32 s3, s2, 256")
    a("s_and_b32 s21, s3, 7")
    a("s_lshr_b32 s20, s3, 3")
    a("s_cmp_ge_u32 s20, 28")
    a("s_cbranch_scc1 L_end_mid")
    a("s_cmp_ge_u32 s20, 14")
    a("s_cbranch_scc0 L_g1_lo")
    a("s_sub_u32 s20, s20, 14")
    a("s_add_u32 s21, s21, 8")
    a.label("L_g1_lo")
    a("s_load_dwordx2 s[6:7], s[0:1], %d" % KA_B1)
    a("s_waitcnt lgkmcnt(0)")
    srd(a, 8, 4, 1835008, WS_W1T)
    srd(a, 12, 4, 0x200000, WS_XN)
    srd(a, 16, 4, 7340032, WS_H)
    srd(a, 24, 6, 3584)
    a("s_lshl_b32 s22, s20, 17")
    a("s_lshl_b32 s23, s21, 17")
    gemm_core(a, "g1", 128, 128, 8, 128, 8, 12, 1024, 1024, 22, 23, False, 4, 64)
    a("v_and_b32 v18, 1, v13")
    a("v_lshrrev_b32 v19, 1, v13")
    a("s_lshl_b32 s22, s20, 7")
    a("v_lshl_add_u32 v20, v18, 6, s22")
    a("v_lshl_add_u32 v20, v15, 2, v20")
    a("v_lshlrev_b32 v21, 1, v20")
    for tn in range(2):
        for g in range(4):
            a(f"buffer_load_dwordx2 v[{128+2*(4*tn+g)}:{129+2*(4*tn+g)}], v21, s[24:27], 0 offen offset:{64*tn+16*g}")
    a("s_lshl_b32 s23, s21, 7")
    a("v_lshl_add_u32 v22, v19, 6, s23")
    a("v_add_u32 v22, v22, v14")
    a("s_movk_i32 s40, 3584")
    a("v_mul_lo_u32 v22, v22, s40")
    a("v_add_u32 v22, v22, v21")
    a(f"v_add_u32 v23, {32*3584}, v22")
    a("s_waitcnt vmcnt(0)")
    for tn in range(2):
        for g in range(4):
            bl = 128 + 2*(4*tn+g)
            a(f"v_lshlrev_b32 v24, 16, v{bl}")
            a(f"v_and_b32 v25, 0xffff0000, v{bl}")
            a(f"v_lshlrev_b32 v26, 16, v{bl+1}")
            a(f"v_and_b32 v27, 0xffff0000, v{bl+1}")
            for tm in range(2):
                c = 64 + 16*(2*tn+tm) + 4*g
                for r in range(4):
                    x = c + r
                    bf16r(a, x, x)
                    a(f"v_add_f32 v{x}, v{x}, v{24+r}")
                    bf16r(a, x, x)
                    a(f"v_mul_f32 v28, v{x}, v{x}")
                    a(f"v_mul_f32 v28, v28, v{x}")
                    a(f"v_fmac_f32 v{x}, 0, v28") if False else None
                    a(f"v_mov_b32 v29, v{x}")
                    a(f"v_fmac_f32 v29, 0x3d372713, v28")
                    a(f"v_mul_f32 v29, 0xc0135761, v29")
                    a(f"v_exp_f32 v29, v29")
                    a("s_nop 0")
                    a(f"v_add_f32 v29, 1.0, v29")
                    a(f"v_rcp_f32 v29, v29")
                    a("s_nop 0")
                    a(f"v_mul_f32 v{x}, v{x}, v29")
                a(f"v_cvt_pk_bf16_f32 v30, v{c}, v{c+1}")
                a(f"v_cvt_pk_bf16_f32 v31, v{c+2}, v{c+3}")
                a(f"buffer_store_dwordx2 v[30:31], v{22+tm}, s[16:19], 0 offen offset:{64*tn+16*g}")
                a("s_nop 1")
    a.label("L_end_mid")
    a("s_endpgm")
    a.label("L_conv")
    a("s_load_dwordx2 s[6:7], s[0:1], %d" % KA_DSKIP)
    a("v_lshrrev_b32 v13, 6, v0")
    a("v_and_b32 v12, 63, v0")
    a("s_nop 0")
    a("v_readfirstlane_b32 s3, v13")
    a("s_lshr_b32 s20, s3, 1")
    a("s_and_b32 s21, s3, 1")
    a("s_lshl_b32 s22, s2, 1")
    a("s_add_u32 s22, s22, s20")
    a("s_waitcnt lgkmcnt(0)")
    srd(a, 8, 4, 512*KR_STRIDE, WS_KR)
    srd(a, 12, 4, 0x200000, WS_XNT)
    srd(a, 16, 4, 0x200000, WS_YAT)
    a("s_lshr_b32 s23, s22, 1")
    a("s_lshl_b32 s23, s23, 2")
    a("s_load_dword s24, s[6:7], s23")
    a("s_mul_i32 s25, s20, 40960")
    a(f"s_mul_i32 s26, s22, {KR_STRIDE}")
    a("v_lshlrev_b32 v3, 4, v12")
    for ci in range(4):
        a(f"s_lshl_b32 s27, s21, 3")
        a(f"s_add_u32 s27, s27, {2*ci}")
        a("s_add_u32 s27, s27, s26")
        a("v_add_u32 v4, s27, v3")
        for j in range(5):
            a(f"buffer_load_dwordx4 v[{32+20*ci+4*j}:{35+20*ci+4*j}], v4, s[8:11], 0 offen offset:{1024*j if j < 4 else 0}" if j < 4 else
              f"buffer_load_dwordx4 v[{32+20*ci+4*j}:{35+20*ci+4*j}], v4, s[8:11], s46 offen") if j < 4 else None
        a("s_movk_i32 s46, 4096")
        a(f"buffer_load_dwordx4 v[{32+20*ci+16}:{35+20*ci+16}], v4, s[8:11], s46 offen")
    a("s_lshl_b32 s27, s22, 12")
    a("s_lshl_b32 s28, s21, 11")
    a("s_add_u32 s27, s27, s28")
    a("v_add_u32 v5, s27, v3")
    a("buffer_load_dwordx4 v[112:115], v5, s[12:15], 0 offen")
    a("buffer_load_dwordx4 v[116:119], v5, s[12:15], 0 offen offset:1024")
    for r in range(4):
        a(f"v_mov_b32 v{120+r}, 0")
    a("s_mul_i32 s28, s21, 1280")
    a("s_add_u32 s28, s28, s25")
    a("s_add_u32 s28, s28, 33280")
    a("v_add_u32 v6, s28, v3")
    a("ds_write_b128 v6, v[120:123]")
    a("v_cmp_gt_u32 vcc, 16, v12")
    a("s_and_saveexec_b64 s[30:31], vcc")
    a("ds_write_b128 v6, v[120:123] offset:1024")
    a("s_mov_b64 exec, s[30:31]")
    a("s_waitcnt vmcnt(0)")
    for ci in range(4):
        a(f"s_lshl_b32 s27, s21, 2")
        a(f"s_add_u32 s27, s27, {ci}")
        a("s_mul_i32 s27, s27, 4160")
        a("s_add_u32 s27, s27, s25")
        a("v_add_u32 v4, s27, v3")
        for j in range(4):
            a(f"ds_write_b128 v4, v[{32+20*ci+4*j}:{35+20*ci+4*j}] offset:{1024*j}")
        a("v_cmp_gt_u32 vcc, 4, v12")
        a("s_and_saveexec_b64 s[30:31], vcc")
        a(f"ds_write_b128 v4, v[{32+20*ci+16}:{35+20*ci+16}] offset:4096")
        a("s_mov_b64 exec, s[30:31]")
    a("s_lshl_b32 s27, s21, 7")
    a("v_add_u32 v7, s27, v12")
    a("v_lshrrev_b32 v8, 2, v7")
    a("v_and_b32 v9, 3, v7")
    a("s_movk_i32 s40, 80")
    a("v_mul_lo_u32 v8, v8, s40")
    a("v_lshl_add_u32 v8, v9, 4, v8")
    a("s_add_u32 s27, s25, %d" % (33280 + 32*80))
    a("v_add_u32 v8, s27, v8")
    a("ds_write_b128 v8, v[112:115]")
    a("ds_write_b128 v8, v[116:119] offset:%d" % (16*80))
    a("s_waitcnt lgkmcnt(0)")
    a("s_barrier")
    a("v_and_b32 v14, 31, v12")
    a("v_lshrrev_b32 v15, 5, v12")
    a("v_and_b32 v16, 7, v14")
    a("v_sub_u32 v16, 7, v16")
    a("s_movk_i32 s40, 4160")
    a("v_mul_lo_u32 v16, v16, s40")
    a("v_lshrrev_b32 v17, 3, v14")
    a("v_lshlrev_b32 v17, 4, v17")
    a("v_sub_u32 v16, v16, v17")
    a("v_lshl_add_u32 v16, v15, 4, v16")
    a("s_lshl_b32 s27, s21, 5")
    a("s_add_u32 s27, s27, s25")
    a("v_add_u32 v16, s27, v16")
    a("s_movk_i32 s40, 80")
    a("v_mul_lo_u32 v17, v14, s40")
    a("v_lshl_add_u32 v17, v15, 4, v17")
    a("s_add_u32 s27, s27, 33280")
    a("v_add_u32 v17, s27, v17")
    for r in range(32):
        a(f"v_mov_b32 v{64+r}, 0")
    for k in range(64):
        f = 20 + 12*(k & 1)
        a(f"ds_read_b128 v[{f}:{f+3}], v16 offset:{4080 - 64*k}")
        a(f"ds_read_b128 v[{f+4}:{f+7}], v17 offset:{(64-k)*80}")
        if k < 32:
            a(f"ds_read_b128 v[{f+8}:{f+11}], v17 offset:{(32-k)*80}")
        a("s_waitcnt lgkmcnt(0)")
        a(f"v_mfma_f32_32x32x16_bf16 v[80:95], v[{f}:{f+3}], v[{f+4}:{f+7}], v[80:95]")
        if k < 32:
            a(f"v_mfma_f32_32x32x16_bf16 v[64:79], v[{f}:{f+3}], v[{f+8}:{f+11}], v[64:79]")
    a("s_nop 15")
    a("s_nop 3")
    a("s_barrier")
    a("s_lshl_b32 s27, s21, 12")
    a("s_add_u32 s27, s27, s25")
    a("v_add_u32 v4, s27, v3")
    a("s_cmp_eq_u32 s21, 0")
    a("s_cbranch_scc0 L_cx1")
    for j in range(4):
        a(f"ds_write_b128 v4, v[{80+4*j}:{83+4*j}] offset:{1024*j}")
    a("s_branch L_cx2")
    a.label("L_cx1")
    for j in range(4):
        a(f"ds_write_b128 v4, v[{64+4*j}:{67+4*j}] offset:{1024*j}")
    for r in range(16):
        a(f"v_mov_b32 v{64+r}, v{80+r}")
    a.label("L_cx2")
    a("s_waitcnt lgkmcnt(0)")
    a("s_barrier")
    a("s_xor_b32 s27, s21, 1")
    a("s_lshl_b32 s27, s27, 12")
    a("s_add_u32 s27, s27, s25")
    a("v_add_u32 v4, s27, v3")
    for j in range(4):
        a(f"ds_read_b128 v[{80+4*j}:{83+4*j}], v4 offset:{1024*j}")
    a("s_movk_i32 s40, 80")
    a("v_mul_lo_u32 v5, v14, s40")
    a("v_lshl_add_u32 v5, v15, 3, v5")
    a("s_mul_i32 s27, s21, 2560")
    a("s_add_u32 s27, s27, s25")
    a("s_add_u32 s27, s27, %d" % (33280 + 32*80))
    a("v_add_u32 v5, s27, v5")
    for g in range(4):
        a(f"ds_read_b64 v[{96+2*g}:{97+2*g}], v5 offset:{16*g}")
    a("s_and_b32 s27, s22, 1")
    a("s_lshl_b32 s27, s27, 4")
    a("s_lshr_b32 s24, s24, s27")
    a("s_lshl_b32 s24, s24, 16")
    a("v_lshlrev_b32 v6, 6, v14")
    a("v_lshl_add_u32 v6, v15, 3, v6")
    a("s_lshl_b32 s27, s22, 12")
    a("s_lshl_b32 s28, s21, 11")
    a("s_add_u32 s27, s27, s28")
    a("v_add_u32 v6, s27, v6")
    a("s_waitcnt lgkmcnt(0)")
    for g in range(4):
        a(f"v_lshlrev_b32 v24, 16, v{96+2*g}")
        a(f"v_and_b32 v25, 0xffff0000, v{96+2*g}")
        a(f"v_lshlrev_b32 v26, 16, v{97+2*g}")
        a(f"v_and_b32 v27, 0xffff0000, v{97+2*g}")
        for r in range(4):
            x = 64 + 4*g + r
            a(f"v_add_f32 v{x}, v{x}, v{80+4*g+r}")
            bf16r(a, x, x)
            a(f"v_mul_f32 v{24+r}, s24, v{24+r}")
            bf16r(a, 24+r, 24+r)
            a(f"v_add_f32 v{x}, v{x}, v{24+r}")
        a(f"v_cvt_pk_bf16_f32 v30, v{64+4*g}, v{65+4*g}")
        a(f"v_cvt_pk_bf16_f32 v31, v{66+4*g}, v{67+4*g}")
        a(f"buffer_store_dwordx2 v[30:31], v6, s[16:19], 0 offen offset:{16*g}")
        a("s_nop 1")
    a("s_endpgm")

def gen_k3(a):
    K = "fin_kernel"
    a(f".globl {K}\n.p2align 8\n.type {K},@function")
    a.label(K)
    if "fin" in SKIP: a("s_endpgm")
    a("s_cmp_ge_u32 s2, 256")
    a("s_cbranch_scc1 L_end_fin")
    a("s_load_dwordx2 s[4:5], s[0:1], %d" % KA_WS)
    a("s_load_dwordx2 s[6:7], s[0:1], %d" % KA_B2)
    a("s_load_dwordx2 s[28:29], s[0:1], %d" % KA_U)
    a("s_load_dwordx2 s[30:31], s[0:1], %d" % KA_OUT)
    stamp(a, 0)
    a("s_and_b32 s21, s2, 7")
    a("s_lshr_b32 s40, s2, 3")
    a("s_and_b32 s20, s40, 7")
    a("s_lshr_b32 s40, s40, 3")
    a("s_lshl_b32 s40, s40, 3")
    a("s_add_u32 s21, s21, s40")
    a("s_waitcnt lgkmcnt(0)")
    srd(a, 8, 4, 1835008, WS_W2T)
    srd(a, 12, 4, 7340032, WS_H)
    srd(a, 16, 4, 0x200000, WS_YAT)
    srd(a, 24, 6, 1024)
    srd(a, 32, 28, 0x200000)
    srd(a, 36, 30, 0x200000)
    a("s_mul_i32 s22, s20, %d" % (64*3584))
    a("s_mul_i32 s23, s21, %d" % (64*3584))
    gemm_core(a, "g2", 64, 64, 14, 256, 8, 12, 3584, 3584, 22, 23, True, 4, 64)
    stamp(a, 3)
    a("s_barrier")
    a("v_readfirstlane_b32 s3, v13")
    a("v_lshlrev_b32 v3, 4, v12")
    for qd in range(4):
        lab = a.newlabel("L_rq")
        a(f"s_cmp_eq_u32 s3, {qd}")
        a(f"s_cbranch_scc1 {lab}")
        a(f"s_sub_u32 s40, s3, {qd+1}")
        a("s_and_b32 s40, s40, 3")
        a("s_lshl_b32 s40, s40, 12")
        a(f"s_add_u32 s40, s40, {qd*12288}")
        a("v_add_u32 v4, s40, v3")
        for j in range(4):
            a(f"ds_write_b128 v4, v[{64+16*qd+4*j}:{67+16*qd+4*j}] offset:{1024*j}")
        a.label(lab)
    a("s_waitcnt lgkmcnt(0)")
    a("s_barrier")
    for qd in range(4):
        lab = a.newlabel("L_mq")
        a(f"s_cmp_lg_u32 s3, {qd}")
        a(f"s_cbranch_scc1 {lab}")
        for r in range(16):
            a(f"v_mov_b32 v{48+r}, v{64+16*qd+r}")
        a.label(lab)
    a("s_mul_i32 s40, s3, 12288")
    a("v_add_u32 v4, s40, v3")
    for sl in range(3):
        for j in range(4):
            a(f"ds_read_b128 v[{64+16*sl+4*j}:{67+16*sl+4*j}], v4 offset:{4096*sl+1024*j}")
    a("s_lshr_b32 s40, s3, 1")
    a("s_and_b32 s41, s3, 1")
    a("s_lshl_b32 s42, s20, 6")
    a("s_lshl_b32 s40, s40, 5")
    a("s_add_u32 s42, s42, s40")
    a("v_lshl_add_u32 v20, v15, 2, s42")
    a("v_lshlrev_b32 v21, 1, v20")
    a("s_lshl_b32 s43, s21, 6")
    a("s_lshl_b32 s41, s41, 5")
    a("s_add_u32 s43, s43, s41")
    a("v_add_u32 v22, s43, v14")
    a("v_lshl_add_u32 v23, v22, 10, v21")
    a("v_lshlrev_b32 v24, 12, v20")
    a("v_lshl_add_u32 v24, v22, 1, v24")
    for g in range(4):
        a(f"buffer_load_dwordx2 v[{112+2*g}:{113+2*g}], v21, s[24:27], 0 offen offset:{16*g}")
        a(f"buffer_load_dwordx2 v[{120+2*g}:{121+2*g}], v23, s[32:35], 0 offen offset:{16*g}")
    for g in range(4):
        for r in range(4):
            a(f"s_mov_b32 s44, {(8*g+r)*4096}")
            a(f"buffer_load_ushort v{128+4*g+r}, v24, s[16:19], s44 offen")
    a("s_waitcnt vmcnt(0) lgkmcnt(0)")
    for g in range(4):
        for half in range(2):
            a(f"v_lshlrev_b32 v{26+2*half}, 16, v{112+2*g+half}")
            a(f"v_and_b32 v{27+2*half}, 0xffff0000, v{112+2*g+half}")
            a(f"v_lshlrev_b32 v{30+2*half}, 16, v{120+2*g+half}")
            a(f"v_and_b32 v{31+2*half}, 0xffff0000, v{120+2*g+half}")
        for r in range(4):
            x = 48 + 4*g + r
            a(f"v_add_f32 v{x}, v{x}, v{64+4*g+r}")
            a(f"v_add_f32 v{x}, v{x}, v{80+4*g+r}")
            a(f"v_add_f32 v{x}, v{x}, v{96+4*g+r}")
            bf16r(a, x, x)
            a(f"v_add_f32 v{x}, v{x}, v{26+r}")
            bf16r(a, x, x)
            a(f"v_lshlrev_b32 v34, 16, v{128+4*g+r}")
            a(f"v_add_f32 v34, v34, v{30+r}")
            bf16r(a, 34, 34)
            a(f"v_add_f32 v{x}, v{x}, v34")
        a(f"v_cvt_pk_bf16_f32 v36, v{48+4*g}, v{49+4*g}")
        a(f"v_cvt_pk_bf16_f32 v37, v{50+4*g}, v{51+4*g}")
        a(f"buffer_store_dwordx2 v[36:37], v23, s[36:39], 0 offen offset:{16*g}")
        a("s_nop 1")
    stamp(a, 4)
    stamp_out(a, 5, 100)
    a.label("L_end_fin")
    a("s_endpgm")

def kd(name, vgpr, sgpr=102, accum=None):
    accum = accum or ((vgpr + 3) // 4 * 4)
    return f""".amdhsa_kernel {name}
  .amdhsa_next_free_vgpr {vgpr}
  .amdhsa_next_free_sgpr {sgpr}
  .amdhsa_accum_offset {accum}
  .amdhsa_group_segment_fixed_size 0
  .amdhsa_kernarg_size 120
  .amdhsa_user_sgpr_count 2
  .amdhsa_user_sgpr_kernarg_segment_ptr 1
  .amdhsa_system_sgpr_workgroup_id_x 1
.end_amdhsa_kernel
"""

def main():
    a = Asm()
    hdr = "; generated by dev/gen.py (own generator)\n"
    hdr += "; @launch kernel=prep_kernel grid=(880,1,1) block=(256,1,1) lds=20480\n"
    hdr += "; @launch kernel=mid_kernel grid=(512,1,1) block=(256,1,1) lds=81920\n"
    hdr += "; @launch kernel=fin_kernel grid=(256,1,1) block=(256,1,1) lds=69632\n"
    hdr += '.amdgcn_target "amdgcn-amd-amdhsa--gfx950"\n.text\n'
    gen_prep(a)
    gen_k2(a)
    gen_k3(a)
    txt = hdr + a.text() + '.section .rodata,"a"\n.p2align 6\n' + kd("prep_kernel", 120) + kd("mid_kernel", 256) + kd("fin_kernel", 256)
    open(os.environ.get("OUTS", f"cdna_kernels/{NAME}.s"), "w").write(txt)

import os
STAMPS = bool(os.environ.get('STAMPS'))
SKIP = os.environ.get('SKIP', '').split(',')
main()
```

```python
import sys
sys.path.insert(0, "dev")
from asmlib import Asm, vr, sr, ar

NAME = "parallel_sum__ssm_conv_s4d__dense_activation_gelu__prompt"
WS_XN   = 0x000000
WS_XNT  = 0x200000
WS_KR   = 0x400000; KR_STRIDE = 4224
WS_W1T  = 0x680000
WS_W2T  = 0x880000
WS_H    = 0xA80000
WS_YAT  = 0x1200000

KA_U, KA_LOGA, KA_AIM, KA_CR, KA_CI, KA_LOGDT, KA_DSKIP, KA_X, KA_W1, KA_B1, KA_W2, KA_B2, KA_OUT, KA_DBG, KA_WS = [8*i for i in range(15)]

def srd(a, s, ptr, size, add=0):
    if add:
        a(f"s_add_u32 s{s}, s{ptr}, {add}")
        a(f"s_addc_u32 s{s+1}, s{ptr+1}, 0")
    else:
        a(f"s_mov_b32 s{s}, s{ptr}")
        a(f"s_mov_b32 s{s+1}, s{ptr+1}")
    a(f"s_mov_b32 s{s+2}, {size}")
    a(f"s_mov_b32 s{s+3}, 0x00020000")

STAMPS = False
def stamp(a, idx):
    if not STAMPS: return
    a(f"s_memtime s[{70+2*idx}:{71+2*idx}]")
    a("s_waitcnt lgkmcnt(0)")
def stamp_out(a, n, wg=0):
    if not STAMPS: return
    if wg < 0: return
    lab = a.newlabel("L_st")
    a(f"s_cmp_lg_u32 s2, {wg}")
    a(f"s_cbranch_scc1 {lab}")
    a("s_load_dwordx2 s[92:93], s[0:1], %d" % KA_DBG)
    a("s_waitcnt lgkmcnt(0)")
    a("v_lshrrev_b32 v1, 6, v0")
    a("v_lshlrev_b32 v1, 6, v1")
    a("v_mov_b32 v3, s93")
    a("v_add_co_u32 v2, vcc, s92, v1")
    a("s_nop 1")
    a("v_addc_co_u32 v3, vcc, 0, v3, vcc")
    for i in range(n):
        a(f"v_mov_b32 v4, s{70+2*i}")
        a(f"global_store_dword v[2:3], v4, off offset:{4*i}")
        a("s_nop 2")
    a.label(lab)

def bf16r(a, d, s):
    a(f"v_cvt_pk_bf16_f32 v{d}, v{s}, v{s}")
    a(f"v_lshlrev_b32 v{d}, 16, v{d}")

def transpose_out(a, lds_row_stride, v_ldsaddr, srd_dst, v_dst, dst_row_stride, vt=32):
    a("s_mov_b32 s44, 0x05040100")
    a("s_mov_b32 s45, 0x07060302")
    for j in range(16):
        a(f"ds_read_b32 v{vt+j}, v{v_ldsaddr} offset:{j*lds_row_stride}")
    a("s_waitcnt lgkmcnt(0)")
    for j in range(8):
        a(f"v_perm_b32 v{vt+16+j}, v{vt+2*j+1}, v{vt+2*j}, s44")
        a(f"v_perm_b32 v{vt+24+j}, v{vt+2*j+1}, v{vt+2*j}, s45")
    a(f"buffer_store_dwordx4 v[{vt+16}:{vt+19}], v{v_dst}, s[{srd_dst}:{srd_dst+3}], 0 offen")
    a(f"buffer_store_dwordx4 v[{vt+20}:{vt+23}], v{v_dst}, s[{srd_dst}:{srd_dst+3}], 0 offen offset:16")
    a(f"v_add_u32 v{v_dst}, {dst_row_stride}, v{v_dst}")
    a(f"buffer_store_dwordx4 v[{vt+24}:{vt+27}], v{v_dst}, s[{srd_dst}:{srd_dst+3}], 0 offen")
    a(f"buffer_store_dwordx4 v[{vt+28}:{vt+31}], v{v_dst}, s[{srd_dst}:{srd_dst+3}], 0 offen offset:16")

def wave_reduce4(a, regs, tmp):
    for x in (1, 2, 4, 8, 16):
        for r, t in zip(regs, tmp):
            a(f"ds_swizzle_b32 v{t}, v{r} offset:{(x << 10) | 0x1f}")
        a("s_waitcnt lgkmcnt(0)")
        for r, t in zip(regs, tmp):
            a(f"v_add_f32 v{r}, v{r}, v{t}")
    a("s_nop 1")
    for i, r in enumerate(regs):
        a(f"v_readlane_b32 s{60+2*i}, v{r}, 0")
        a(f"v_readlane_b32 s{61+2*i}, v{r}, 32")
    a("s_nop 1")
    for i, r in enumerate(regs):
        a(f"v_mov_b32 v{r}, s{60+2*i}")
        a(f"v_add_f32 v{r}, s{61+2*i}, v{r}")

def gen_prep(a):
    K = "prep_kernel"
    a(f".globl {K}\n.p2align 8\n.type {K},@function")
    a.label(K)
    a("s_load_dwordx2 s[4:5], s[0:1], %d" % KA_WS)
    a("s_cmp_lt_u32 s2, 128")
    a("s_cbranch_scc1 L_ln")
    a("s_cmp_lt_u32 s2, 256")
    a("s_cbranch_scc1 L_w1")
    a("s_cmp_lt_u32 s2, 368")
    a("s_cbranch_scc1 L_w2")
    a("s_endpgm")
    a.label("L_ln")
    if "ln" in SKIP: a("s_endpgm")
    a("s_load_dwordx2 s[6:7], s[0:1], %d" % KA_U)
    a("s_mov_b32 s3, s2")
    a("v_and_b32 v1, 63, v0")
    a("v_lshrrev_b32 v2, 6, v0")
    a("s_lshl_b32 s20, s3, 14")
    a("v_lshlrev_b32 v3, 12, v2")
    a("v_lshl_add_u32 v3, v1, 4, v3")
    a("v_add_u32 v4, s20, v3")
    a("s_waitcnt lgkmcnt(0)")
    srd(a, 8, 6, 0x200000)
    srd(a, 12, 4, 0x200000, WS_XN)
    srd(a, 16, 4, 0x200000, WS_XNT)
    for j in range(4):
        a(f"buffer_load_dwordx4 v[{8+4*j}:{11+4*j}], v4, s[8:11], 0 offen offset:{1024*j}")
    a("s_waitcnt vmcnt(0)")
    for j in range(4):
        for e in range(4):
            a(f"v_lshlrev_b32 v{32+8*j+2*e}, 16, v{8+4*j+e}")
            a(f"v_and_b32 v{33+8*j+2*e}, 0xffff0000, v{8+4*j+e}")
    for j in range(4):
        a(f"v_add_f32 v{64+j}, v{32+8*j}, v{33+8*j}")
        for e in range(2, 8):
            a(f"v_add_f32 v{64+j}, v{64+j}, v{32+8*j+e}")
    wave_reduce4(a, [64, 65, 66, 67], [68, 69, 70, 71])
    for j in range(4):
        a(f"v_mul_f32 v{64+j}, 0x3b000000, v{64+j}")
    for j in range(4):
        for e in range(8):
            a(f"v_sub_f32 v76, v{32+8*j+e}, v{64+j}")
            if e == 0:
                a(f"v_mul_f32 v{72+j}, v76, v76")
            else:
                a(f"v_fmac_f32 v{72+j}, v76, v76")
    wave_reduce4(a, [72, 73, 74, 75], [68, 69, 70, 71])
    for j in range(4):
        a(f"v_mul_f32 v{72+j}, 0x3b000000, v{72+j}")
        bf16r(a, 64+j, 64+j)
        bf16r(a, 72+j, 72+j)
        a(f"v_add_f32 v{72+j}, 0x3727c5ac, v{72+j}")
        bf16r(a, 72+j, 72+j)
        a(f"v_sqrt_f32 v{72+j}, v{72+j}")
        a("s_nop 0")
        bf16r(a, 72+j, 72+j)
        a(f"v_rcp_f32 v{76+j}, v{72+j}")
    a("s_nop 0")
    for j in range(4):
        for e in range(8):
            r = 32+8*j+e
            a(f"v_sub_f32 v{r}, v{r}, v{64+j}")
            bf16r(a, r, r)
            a(f"v_mul_f32 v80, v{r}, v{76+j}")
            a(f"v_fma_f32 v81, -v80, v{72+j}, v{r}")
            a(f"v_fma_f32 v{r}, v81, v{76+j}, v80")
        for e in range(4):
            a(f"v_cvt_pk_bf16_f32 v{8+4*j+e}, v{32+8*j+2*e}, v{33+8*j+2*e}")
    for j in range(4):
        a(f"buffer_store_dwordx4 v[{8+4*j}:{11+4*j}], v4, s[12:15], 0 offen offset:{1024*j}")
        a(f"ds_write_b128 v3, v[{8+4*j}:{11+4*j}] offset:{1024*j}")
    a("s_waitcnt lgkmcnt(0)")
    a("s_barrier")
    a("v_lshlrev_b32 v5, 2, v0")
    a("v_lshlrev_b32 v6, 13, v0")
    a("s_lshl_b32 s20, s3, 5")
    a("v_add_u32 v6, s20, v6")
    transpose_out(a, 1024, 5, 16, 6, 4096)
    a("s_endpgm")
    a.label("L_w1")
    if "w" in SKIP: a("s_endpgm")
    a("s_load_dwordx2 s[6:7], s[0:1], %d" % KA_W1)
    a("s_sub_u32 s3, s2, 128")
    a("s_and_b32 s21, s3, 7")
    a("s_lshr_b32 s20, s3, 3")
    a("s_cmp_eq_u32 s21, 7")
    a("s_cbranch_scc1 L_end_prep")
    a("s_lshl_b32 s20, s20, 5")
    a("s_lshl_b32 s21, s21, 8")
    a("s_movk_i32 s22, 3584")
    a("s_movk_i32 s23, 1024")
    a("s_waitcnt lgkmcnt(0)")
    srd(a, 8, 6, 1835008)
    srd(a, 12, 4, 1835008, WS_W1T)
    a("s_branch L_wt")
    a.label("L_w2")
    if "w" in SKIP: a("s_endpgm")
    a("s_load_dwordx2 s[6:7], s[0:1], %d" % KA_W2)
    a("s_sub_u32 s3, s2, 256")
    a("s_and_b32 s21, s3, 1")
    a("s_lshr_b32 s20, s3, 1")
    a("s_lshl_b32 s20, s20, 5")
    a("s_lshl_b32 s21, s21, 8")
    a("s_movk_i32 s22, 1024")
    a("s_movk_i32 s23, 3584")
    a("s_waitcnt lgkmcnt(0)")
    srd(a, 8, 6, 1835008)
    srd(a, 12, 4, 1835008, WS_W2T)
    a.label("L_wt")
    a("v_lshrrev_b32 v1, 5, v0")
    a("v_and_b32 v2, 31, v0")
    a("v_lshlrev_b32 v2, 4, v2")
    a("v_add_u32 v3, s20, v1")
    a("v_mul_lo_u32 v3, v3, s22")
    a("s_lshl_b32 s24, s21, 1")
    a("v_add3_u32 v3, v3, v2, s24")
    a("s_lshl_b32 s25, s22, 3")
    a("v_lshl_add_u32 v4, v1, 9, v2")
    for i in range(4):
        a(f"buffer_load_dwordx4 v[{8+4*i}:{11+4*i}], v3, s[8:11], 0 offen")
        if i < 3:
            a("v_add_u32 v3, s25, v3")
    a("s_waitcnt vmcnt(0)")
    for i in range(4):
        a(f"ds_write_b128 v4, v[{8+4*i}:{11+4*i}] offset:{4096*i}")
    a("s_waitcnt lgkmcnt(0)")
    a("s_barrier")
    a("v_and_b32 v1, 127, v0")
    a("v_lshrrev_b32 v2, 7, v0")
    a("v_lshlrev_b32 v5, 13, v2")
    a("v_lshl_add_u32 v5, v1, 2, v5")
    a("v_lshl_add_u32 v6, v1, 1, s21")
    a("v_mul_lo_u32 v6, v6, s23")
    a("s_lshl_b32 s24, s20, 1")
    a("v_lshlrev_b32 v7, 5, v2")
    a("v_add3_u32 v6, v6, v7, s24")
    a("s_mov_b32 s44, 0x05040100")
    a("s_mov_b32 s45, 0x07060302")
    vt = 32
    for j in range(16):
        a(f"ds_read_b32 v{vt+j}, v5 offset:{j*512}")
    a("s_waitcnt lgkmcnt(0)")
    for j in range(8):
        a(f"v_perm_b32 v{vt+16+j}, v{vt+2*j+1}, v{vt+2*j}, s44")
        a(f"v_perm_b32 v{vt+24+j}, v{vt+2*j+1}, v{vt+2*j}, s45")
    a(f"buffer_store_dwordx4 v[{vt+16}:{vt+19}], v6, s[12:15], 0 offen")
    a(f"buffer_store_dwordx4 v[{vt+20}:{vt+23}], v6, s[12:15], 0 offen offset:16")
    a(f"v_add_u32 v6, s23, v6")
    a(f"buffer_store_dwordx4 v[{vt+24}:{vt+27}], v6, s[12:15], 0 offen")
    a(f"buffer_store_dwordx4 v[{vt+28}:{vt+31}], v6, s[12:15], 0 offen offset:16")
    a.label("L_end_prep")
    a("s_endpgm")


def gemm_core(a, tag, RA, RB, nsteps, KS, srdA, srdB, strideA, strideB, sA0, sB0, splitk, depth, vbase_acc, lds0=0):
    RS = KS + 16
    cpr = KS // 16
    rows_per_pass = 256 // cpr
    nA = RA // rows_per_pass; nB = RB // rows_per_pass; nch = nA + nB
    stage_bytes = (RA + RB) * RS
    VS = 128
    sh = {8: 3, 16: 4}[cpr]
    a(f"v_lshrrev_b32 v1, {sh}, v0")
    a(f"v_and_b32 v2, {cpr-1}, v0")
    a("v_lshlrev_b32 v2, 4, v2")
    a(f"s_mov_b32 s40, {strideA}")
    a("v_mul_lo_u32 v3, v1, s40")
    a(f"v_add3_u32 v3, v3, v2, s{sA0}")
    a(f"s_mov_b32 s40, {strideB}")
    a("v_mul_lo_u32 v4, v1, s40")
    a(f"v_add3_u32 v4, v4, v2, s{sB0}")
    a(f"s_movk_i32 s40, {RS}")
    a("v_mul_lo_u32 v5, v1, s40")
    a("v_add_u32 v5, v5, v2")
    if lds0: a(f"v_add_u32 v5, {lds0}, v5")
    for i in range(1, max(nA, nB)):
        if i < nA:
            a(f"v_add_u32 v{6+i-1}, {rows_per_pass*i*strideA}, v3")
        if i < nB:
            a(f"v_add_u32 v{9+i-1}, {rows_per_pass*i*strideB}, v4")
    offA = [3] + [6+i for i in range(nA-1)]
    offB = [4] + [9+i for i in range(nB-1)]
    def issue(step):
        slot = step % depth
        a(f"s_movk_i32 s41, {step*KS}")
        base = VS + slot * nch * 4
        for i in range(nA):
            a(f"buffer_load_dwordx4 v[{base+4*i}:{base+4*i+3}], v{offA[i]}, s[{srdA}:{srdA+3}], s41 offen")
        for i in range(nB):
            b = base + 4*(nA+i)
            a(f"buffer_load_dwordx4 v[{b}:{b+3}], v{offB[i]}, s[{srdB}:{srdB+3}], s41 offen")
    def lds_write(step):
        slot = step % depth
        base = VS + slot * nch * 4
        vw = 5 if (step & 1) == 0 else 56
        for i in range(nA):
            a(f"ds_write_b128 v{vw}, v[{base+4*i}:{base+4*i+3}] offset:{rows_per_pass*i*RS}")
        for i in range(nB):
            b = base + 4*(nA+i)
            a(f"ds_write_b128 v{vw}, v[{b}:{b+3}] offset:{RA*RS + rows_per_pass*i*RS}")
    a("v_and_b32 v12, 63, v0")
    a("v_lshrrev_b32 v13, 6, v0")
    a("v_and_b32 v14, 31, v12")
    a("v_lshrrev_b32 v15, 5, v12")
    a("v_mul_lo_u32 v16, v14, s40")
    a("v_lshl_add_u32 v16, v15, 4, v16")
    if lds0: a(f"v_add_u32 v16, {lds0}, v16")
    if splitk:
        a(f"s_movk_i32 s42, {KS//4}")
        a("v_mul_lo_u32 v18, v13, s42")
        a("v_add_u32 v16, v16, v18")
        a(f"v_add_u32 v17, {RA*RS}, v16")
        S = KS // 128
    else:
        a("v_and_b32 v18, 1, v13")
        a("v_lshrrev_b32 v19, 1, v13")
        a(f"s_movk_i32 s42, {64*RS}")
        a("v_mul_lo_u32 v18, v18, s42")
        a("v_mul_lo_u32 v19, v19, s42")
        a(f"v_add_u32 v17, {RA*RS}, v16")
        a("v_add_u32 v17, v17, v19")
        a("v_add_u32 v16, v16, v18")
        S = KS // 32
    a(f"v_add_u32 v56, {stage_bytes}, v5")
    a(f"v_add_u32 v57, {stage_bytes}, v16")
    a(f"v_add_u32 v58, {stage_bytes}, v17")
    for p in range(min(depth, nsteps)):
        issue(p)
    for r in range(64):
        a(f"v_mov_b32 v{vbase_acc+r}, 0")
    a(f"s_waitcnt vmcnt({(min(depth, nsteps)-1)*nch})")
    lds_write(0)
    a("s_waitcnt lgkmcnt(0)")
    if depth < nsteps:
        issue(depth)
    a("s_barrier")
    stamp(a, 1)
    def reads(k, s_):
        vA, vB = (16, 17) if (k & 1) == 0 else (57, 58)
        f = 20 + 16 * (s_ & 1)
        a(f"ds_read_b128 v[{f}:{f+3}], v{vA} offset:{s_*32}")
        a(f"ds_read_b128 v[{f+4}:{f+7}], v{vA} offset:{s_*32 + 32*RS}")
        a(f"ds_read_b128 v[{f+8}:{f+11}], v{vB} offset:{s_*32}")
        a(f"ds_read_b128 v[{f+12}:{f+15}], v{vB} offset:{s_*32 + 32*RS}")
    def mfmas(s_):
        f = 20 + 16 * (s_ & 1)
        for tn in range(2):
            for tm in range(2):
                c = vbase_acc + 16*(2*tn+tm)
                a(f"v_mfma_f32_32x32x16_bf16 v[{c}:{c+15}], v[{f+4*tn}:{f+4*tn+3}], v[{f+8+4*tm}:{f+8+4*tm+3}], v[{c}:{c+15}]")
    for k in range(nsteps):
        more = k + 1 < nsteps
        if k == nsteps // 2: stamp(a, 2)
        reads(k, 0)
        if S > 1: reads(k, 1)
        wrote = False
        for s_ in range(S):
            pend = 4 if s_ + 1 < S else 0
            if wrote: pend += nch
            a(f"s_waitcnt lgkmcnt({pend})")
            mfmas(s_)
            if s_ + 2 < S:
                reads(k, s_ + 2)
            if more and not wrote and s_ + 2 >= S and (s_ == S - 2 or S == 1):
                outstanding = min(depth, nsteps - 1 - k)
                a(f"s_waitcnt vmcnt({(outstanding-1)*nch})")
                lds_write(k + 1)
                wrote = True
        if more:
            a("s_waitcnt lgkmcnt(0)")
            if k + 1 + depth < nsteps:
                issue(k + 1 + depth)
            a("s_barrier")
    a("s_nop 15")
    a("s_nop 3")

def gemm_dma(a, RA, RB, nsteps, KS, NBUF, srdA, srdB, strideA, strideB, sA0, sB0, splitk, acc, hook=None, npre=0):
    cpr = KS // 16; rpi = 64 // cpr
    lc = {4: 2, 8: 3, 16: 4}[cpr]
    nA = RA * KS // 4096; nB = RB * KS // 4096; ni = nA + nB
    SB = (RA + RB) * KS
    FR = 128
    a("v_and_b32 v12, 63, v0")
    a("v_lshrrev_b32 v13, 6, v0")
    a("v_and_b32 v14, 31, v12")
    a("v_lshrrev_b32 v15, 5, v12")
    a("v_readfirstlane_b32 s3, v13")
    a(f"v_lshrrev_b32 v1, {lc}, v12")
    a(f"v_lshl_add_u32 v1, v13, {6-lc}, v1")
    a(f"v_and_b32 v2, {cpr-1}, v12")
    if KS == 256:   a("v_and_b32 v3, 15, v1")
    elif KS == 128:
        a("v_lshrrev_b32 v3, 1, v1"); a("v_and_b32 v3, 7, v3")
    else:
        a("v_lshrrev_b32 v3, 2, v1"); a("v_and_b32 v3, 3, v3")
    a("v_xor_b32 v2, v2, v3")
    a("v_lshlrev_b32 v2, 4, v2")
    a(f"s_mov_b32 s40, {strideA}")
    a("v_mul_lo_u32 v3, v1, s40")
    a(f"v_add3_u32 v20, v3, v2, s{sA0}")
    a(f"s_mov_b32 s40, {strideB}")
    a("v_mul_lo_u32 v3, v1, s40")
    a(f"v_add3_u32 v{20+nA}, v3, v2, s{sB0}")
    for t in range(1, nA):
        a(f"v_add_u32 v{20+t}, {t*4*rpi*strideA}, v20")
    for t in range(1, nB):
        a(f"v_add_u32 v{20+nA+t}, {t*4*rpi*strideB}, v{20+nA}")
    a("s_lshl_b32 s46, s3, 10")
    def issue(st):
        buf = st % NBUF
        a(f"s_movk_i32 s41, {st*KS}")
        for t in range(ni):
            a(f"s_add_u32 m0, s46, {buf*SB + t*4096}")
            a("s_nop 0")
            sr_ = srdA if t < nA else srdB
            a(f"buffer_load_dwordx4 v{20+t}, s[{sr_}:{sr_+3}], s41 offen lds")
    for st in range(min(NBUF, nsteps)):
        issue(st)
    if KS == 256:   a("v_and_b32 v3, 15, v14")
    elif KS == 128:
        a("v_lshrrev_b32 v3, 1, v14"); a("v_and_b32 v3, 7, v3")
    else:
        a("v_lshrrev_b32 v3, 2, v14"); a("v_and_b32 v3, 3, v3")
    lk = {64: 6, 128: 7, 256: 8}[KS]
    if splitk:
        assert KS == 256
        a("v_lshl_add_u32 v4, v13, 2, v15")
        a("v_add_u32 v5, 2, v4")
        a(f"v_lshlrev_b32 v6, {lk}, v14")
        a(f"v_add_u32 v7, {RA*KS}, v6")
    else:
        assert KS == 64
        a("v_mov_b32 v4, v15")
        a("v_add_u32 v5, 2, v4")
        a("v_and_b32 v8, 1, v13")
        a("v_lshrrev_b32 v9, 1, v13")
        a("v_lshl_add_u32 v6, v8, 6, v14")
        a(f"v_lshlrev_b32 v6, {lk}, v6")
        a("v_lshl_add_u32 v7, v9, 6, v14")
        a(f"v_lshlrev_b32 v7, {lk}, v7")
        a(f"v_add_u32 v7, {RA*KS}, v7")
    a("v_xor_b32 v4, v4, v3")
    a("v_xor_b32 v5, v5, v3")
    a("v_lshl_add_u32 v28, v4, 4, v6")
    a("v_lshl_add_u32 v29, v5, 4, v6")
    a("v_lshl_add_u32 v30, v4, 4, v7")
    a("v_lshl_add_u32 v31, v5, 4, v7")
    for i in range(4):
        a(f"v_add_u32 v{32+i}, 0x10000, v{28+i}")
    for r in range(64):
        a(f"v_mov_b32 v{acc+r}, 0")
    def reads(st):
        off = (st % NBUF) * SB
        base = 28
        if off >= 65536: off -= 65536; base = 32
        f = FR + 32 * (st & 1)
        for j in range(2):
            a(f"ds_read_b128 v[{f+16*j}:{f+16*j+3}], v{base+j} offset:{off}")
            a(f"ds_read_b128 v[{f+16*j+4}:{f+16*j+7}], v{base+j} offset:{off + 32*KS}")
            a(f"ds_read_b128 v[{f+16*j+8}:{f+16*j+11}], v{base+2+j} offset:{off}")
            a(f"ds_read_b128 v[{f+16*j+12}:{f+16*j+15}], v{base+2+j} offset:{off + 32*KS}")
    def mfmas(st):
        f = FR + 32 * (st & 1)
        for j in range(2):
            for tn in range(2):
                for tm in range(2):
                    c = acc + 16*(2*tn+tm)
                    a(f"v_mfma_f32_32x32x16_bf16 v[{c}:{c+15}], v[{f+16*j+4*tn}:{f+16*j+4*tn+3}], v[{f+16*j+8+4*tm}:{f+16*j+8+4*tm+3}], v[{c}:{c+15}]")
    extra = [0]
    def waitstage(need, last_issued):
        n = (last_issued - need) * ni + extra[0]
        a(f"s_waitcnt vmcnt({n})")
    last = min(NBUF, nsteps) - 1
    waitstage(0, last)
    a("s_barrier")
    reads(0)
    stamp(a, 1)
    for k in range(nsteps):
        if k == nsteps // 2: stamp(a, 2)
        if k + 1 < nsteps:
            a("s_waitcnt lgkmcnt(0)")
            waitstage(k + 1, last)
            a("s_barrier")
            if k + NBUF < nsteps:
                issue(k + NBUF); last = k + NBUF
                if k + NBUF == nsteps - 1 and hook is not None:
                    hook(a); extra[0] = npre
            reads(k + 1)
        else:
            a("s_waitcnt lgkmcnt(0)")
        mfmas(k)
    a("s_nop 15")
    a("s_nop 3")

def gen_k2(a):
    K = "mid_kernel"
    a(f".globl {K}\n.p2align 8\n.type {K},@function")
    a.label(K)
    if "mid" in SKIP: a("s_endpgm")
    a("s_load_dwordx2 s[4:5], s[0:1], %d" % KA_WS)
    a("s_cmp_lt_u32 s2, 256")
    a("s_cbranch_scc1 L_conv")
    a("s_cmp_lt_u32 s2, 512")
    a("s_cbranch_scc1 L_g1")
    a("s_endpgm")
    a.label("L_g1")
    a("s_sub_u32 s3, s2, 256")
    a("s_and_b32 s21, s3, 7")
    a("s_lshr_b32 s20, s3, 3")
    a("s_cmp_ge_u32 s20, 28")
    a("s_cbranch_scc1 L_end_mid")
    a("s_cmp_ge_u32 s20, 14")
    a("s_cbranch_scc0 L_g1_lo")
    a("s_sub_u32 s20, s20, 14")
    a("s_add_u32 s21, s21, 8")
    a.label("L_g1_lo")
    a("s_load_dwordx2 s[6:7], s[0:1], %d" % KA_B1)
    a("s_waitcnt lgkmcnt(0)")
    srd(a, 8, 4, 1835008, WS_W1T)
    srd(a, 12, 4, 0x200000, WS_XN)
    srd(a, 16, 4, 7340032, WS_H)
    srd(a, 24, 6, 3584)
    a("s_lshl_b32 s22, s20, 17")
    a("s_lshl_b32 s23, s21, 17")
    a("s_mov_b32 s47, 0x3d372713")
    stamp(a, 0)
    def hook1(a):
        a("v_and_b32 v36, 1, v13")
        a("s_lshl_b32 s42, s20, 7")
        a("v_lshl_add_u32 v37, v36, 6, s42")
        a("v_lshl_add_u32 v37, v15, 2, v37")
        a("v_lshlrev_b32 v37, 1, v37")
        for tn in range(2):
            for g in range(4):
                a(f"buffer_load_dwordx2 v[{192+2*(4*tn+g)}:{193+2*(4*tn+g)}], v37, s[24:27], 0 offen offset:{64*tn+16*g}")
    gemm_dma(a, 128, 128, 16, 64, 5, 8, 12, 1024, 1024, 22, 23, False, 64, hook=hook1, npre=8)
    stamp(a, 3)
    a("v_lshrrev_b32 v19, 1, v13")
    a("s_lshl_b32 s23, s21, 7")
    a("v_lshl_add_u32 v22, v19, 6, s23")
    a("v_add_u32 v22, v22, v14")
    a("s_movk_i32 s40, 3584")
    a("v_mul_lo_u32 v22, v22, s40")
    a("v_add_u32 v22, v22, v37")
    a(f"v_add_u32 v23, {32*3584}, v22")
    a("s_waitcnt vmcnt(0)")
    for tn in range(2):
        for g in range(4):
            bl = 192 + 2*(4*tn+g)
            a(f"v_lshlrev_b32 v24, 16, v{bl}")
            a(f"v_and_b32 v25, 0xffff0000, v{bl}")
            a(f"v_lshlrev_b32 v26, 16, v{bl+1}")
            a(f"v_and_b32 v27, 0xffff0000, v{bl+1}")
            for tm in range(2):
                c = 64 + 16*(2*tn+tm) + 4*g
                for r in range(4):
                    x = c + r
                    bf16r(a, x, x)
                    a(f"v_add_f32 v{x}, v{x}, v{24+r}")
                    bf16r(a, x, x)
                for r in range(4):
                    x = c + r
                    a(f"v_mul_f32 v{28+r}, v{x}, v{x}")
                for r in range(4):
                    x = c + r
                    a(f"v_mul_f32 v{28+r}, v{28+r}, v{x}")
                for r in range(4):
                    x = c + r
                    a(f"v_fma_f32 v{28+r}, v{28+r}, s47, v{x}")
                for r in range(4):
                    a(f"v_mul_f32 v{28+r}, 0xc0135761, v{28+r}")
                for r in range(4):
                    a(f"v_exp_f32 v{28+r}, v{28+r}")
                for r in range(4):
                    a(f"v_add_f32 v{28+r}, 1.0, v{28+r}")
                for r in range(4):
                    a(f"v_rcp_f32 v{28+r}, v{28+r}")
                for r in range(4):
                    x = c + r
                    a(f"v_mul_f32 v{x}, v{x}, v{28+r}")
                a(f"v_cvt_pk_bf16_f32 v32, v{c}, v{c+1}")
                a(f"v_cvt_pk_bf16_f32 v33, v{c+2}, v{c+3}")
                a(f"buffer_store_dwordx2 v[32:33], v{22+tm}, s[16:19], 0 offen offset:{64*tn+16*g}")
                a("s_nop 1")
    stamp(a, 4)
    stamp_out(a, 5, G1WG)
    a.label("L_end_mid")
    a("s_endpgm")
    a.label("L_conv")
    a("s_load_dwordx2 s[6:7], s[0:1], %d" % KA_DSKIP)
    a("s_load_dwordx4 s[48:51], s[0:1], %d" % KA_LOGA)
    a("s_load_dwordx4 s[52:55], s[0:1], %d" % KA_CR)
    a("s_load_dwordx2 s[56:57], s[0:1], %d" % KA_LOGDT)
    a("v_lshrrev_b32 v13, 6, v0")
    a("v_and_b32 v12, 63, v0")
    a("s_nop 0")
    a("v_readfirstlane_b32 s3, v13")
    a("s_lshr_b32 s20, s3, 1")
    a("s_and_b32 s21, s3, 1")
    a("s_lshl_b32 s22, s2, 1")
    a("s_add_u32 s22, s22, s20")
    a("s_waitcnt lgkmcnt(0)")
    a("s_lshl_b32 s23, s2, 2")
    a("s_load_dword s24, s[6:7], s23")
    a("s_load_dword s60, s[56:57], s23")
    srd(a, 12, 4, 0x200000, WS_XNT)
    srd(a, 16, 4, 0x200000, WS_YAT)
    srd(a, 28, 48, 131072)
    srd(a, 32, 50, 131072)
    srd(a, 36, 52, 131072)
    srd(a, 40, 54, 131072)
    stamp(a, 0)
    a("s_mul_i32 s25, s20, 40960")
    a("v_lshlrev_b32 v3, 4, v12")
    a("s_lshl_b32 s26, s2, 9")
    a("v_lshl_add_u32 v2, v0, 1, s26")
    a("buffer_load_ushort v4, v2, s[28:31], 0 offen")
    a("buffer_load_ushort v5, v2, s[32:35], 0 offen")
    a("buffer_load_ushort v6, v2, s[36:39], 0 offen")
    a("buffer_load_ushort v7, v2, s[40:43], 0 offen")
    a("s_lshl_b32 s27, s22, 12")
    a("s_lshl_b32 s28, s21, 11")
    a("s_add_u32 s27, s27, s28")
    a("v_add_u32 v1, s27, v3")
    a("buffer_load_dwordx4 v[200:203], v1, s[12:15], 0 offen")
    a("buffer_load_dwordx4 v[204:207], v1, s[12:15], 0 offen offset:1024")
    for r in range(4):
        a(f"v_mov_b32 v{120+r}, 0")
    a("s_mul_i32 s28, s21, 1280")
    a("s_add_u32 s28, s28, s25")
    a("s_add_u32 s28, s28, 33280")
    a("v_add_u32 v1, s28, v3")
    a("ds_write_b128 v1, v[120:123]")
    a("v_cmp_gt_u32 vcc, 16, v12")
    a("s_and_saveexec_b64 s[30:31], vcc") if False else None
    a("s_and_saveexec_b64 s[58:59], vcc")
    a("ds_write_b128 v1, v[120:123] offset:1024")
    a("s_mov_b64 exec, s[58:59]")
    a("v_lshrrev_b32 v1, 2, v12")
    a("s_movk_i32 s40, 4160")
    a("v_mul_lo_u32 v1, v1, s40")
    a("v_and_b32 v2, 3, v12")
    a("v_lshl_add_u32 v1, v2, 4, v1")
    a("s_add_u32 s28, s25, 4096")
    a("v_add_u32 v124, s28, v1")
    a("v_cmp_gt_u32 vcc, 16, v12")
    a("s_and_saveexec_b64 s[58:59], vcc")
    a("ds_write_b128 v124, v[120:123]")
    a("s_mov_b64 exec, s[58:59]")
    a("s_waitcnt lgkmcnt(0)")
    a("s_lshl_b32 s41, s20, 4")
    a("s_lshr_b32 s60, s60, s41")
    a("s_lshl_b32 s60, s60, 16")
    a("s_lshr_b32 s24, s24, s41")
    a("s_lshl_b32 s24, s24, 16")
    a("v_mov_b32 v8, s60")
    a("v_mul_f32 v8, 0x3fb8aa3b, v8")
    a("v_exp_f32 v8, v8")
    a("s_nop 0")
    bf16r(a, 8, 8)
    a("s_waitcnt vmcnt(2)")
    for r in (4, 5, 6, 7):
        a(f"v_lshlrev_b32 v{r}, 16, v{r}")
    a("v_mul_f32 v4, 0x3fb8aa3b, v4")
    a("v_exp_f32 v4, v4")
    a("s_nop 0")
    bf16r(a, 4, 4)
    a("v_mul_f32 v4, v4, v8")
    a("v_mul_f32 v8, v8, v8") if False else None
    a("v_mul_f32 v16, 0xbfb8aa3b, v4")
    a("v_mov_b32 v9, s60")
    a("v_mul_f32 v9, 0x3fb8aa3b, v9")
    a("v_exp_f32 v9, v9")
    a("s_nop 0")
    bf16r(a, 9, 9)
    a("v_mul_f32 v5, v5, v9")
    a("v_mul_f32 v17, 0x3e22f983, v5")
    a("v_mul_f32 v6, v6, v9")
    a("v_mul_f32 v7, v7, v9")
    a("v_add_f32 v18, v6, v6")
    a("v_add_f32 v19, v7, v7")
    PO = 16640 + 8192
    TO = 16640
    a("v_and_b32 v1, 127, v0")
    a("v_lshlrev_b32 v1, 4, v1")
    a("v_add_u32 v1, s25, v1")
    a(f"ds_write_b128 v1, v[16:19] offset:{PO}")
    a("s_waitcnt lgkmcnt(0)")
    a("s_barrier")
    a("v_and_b32 v3, 15, v12")
    a("v_lshrrev_b32 v4, 4, v12")
    a("v_cvt_f32_u32 v20, v3")
    a("v_mul_f32 v21, 0x41800000, v20")
    a("v_mul_f32 v22, 0x42000000, v20")
    a("v_add_f32 v22, 0x43800000, v22")
    a("s_lshl_b32 s40, s21, 10")
    a("s_add_u32 s40, s40, s25")
    a("v_lshl_add_u32 v23, v4, 4, s40")
    for r in range(16):
        a(f"v_mov_b32 v{40+r}, 0")
    stamp(a, 1)
    a(f"ds_read_b128 v[24:27], v23 offset:{PO}")
    NG = 16
    for g in range(NG):
        p = 24 + 4*(g & 1)
        R = 56 + 24*(g & 1)
        B = [R + 2*w for w in range(4)]
        X = [R + 8 + 2*w for w in range(4)]
        Rr = [R + 16 + 2*w for w in range(4)]
        T = 104
        if g < NG-1:
            pn = 24 + 4*((g+1) & 1)
            a(f"ds_read_b128 v[{pn}:{pn+3}], v23 offset:{PO + 64*(g+1)}")
            a("s_waitcnt lgkmcnt(1)")
        else:
            a("s_waitcnt lgkmcnt(0)")
        pos = [20, 21, 22]
        for j in range(3):
            a(f"v_mul_f32 v{T+4*j}, v{p}, v{pos[j]}")
            a(f"v_mul_f32 v{T+4*j+1}, v{p+1}, v{pos[j]}")
        for j in range(3):
            a(f"v_exp_f32 v{T+4*j}, v{T+4*j}")
            a(f"v_fract_f32 v{T+4*j+1}, v{T+4*j+1}")
        for j in range(3):
            a(f"v_cos_f32 v{T+4*j+2}, v{T+4*j+1}")
            a(f"v_sin_f32 v{T+4*j+3}, v{T+4*j+1}")
        dst = [B[0], X[0], X[1]]
        for j in (1, 0, 2):
            a(f"v_mul_f32 v{dst[j]}, v{T+4*j}, v{T+4*j+2}")
            a(f"v_mul_f32 v{dst[j]+1}, v{T+4*j}, v{T+4*j+3}")
        def sq(d, s):
            a(f"v_mul_f32 v{T+12}, v{s+1}, v{s+1}")
            a(f"v_mul_f32 v{T+13}, v{s}, v{s+1}")
            a(f"v_fma_f32 v{d}, v{s}, v{s}, -v{T+12}")
            a(f"v_add_f32 v{d+1}, v{T+13}, v{T+13}")
        def cmul(d, x):
            a(f"v_mul_f32 v{T+14}, v{x+1}, v{p+3}")
            a(f"v_mul_f32 v{T+15}, v{x+1}, v{p+2}")
            a(f"v_fma_f32 v{d}, v{x}, v{p+2}, -v{T+14}")
            a(f"v_fma_f32 v{d+1}, -v{x}, v{p+3}, -v{T+15}")
        def mf(w, part):
            a(f"v_mfma_f32_16x16x4_f32 v[{40+4*w}:{43+4*w}], v{Rr[w]+part}, v{B[w]+part}, v[{40+4*w}:{43+4*w}]")
        cmul(Rr[0], X[0])
        sq(B[1], B[0])
        mf(0, 0)
        cmul(Rr[1], X[1])
        sq(X[2], X[1])
        mf(0, 1)
        sq(B[2], B[1])
        mf(1, 0)
        cmul(Rr[2], X[2])
        sq(X[3], X[2])
        mf(1, 1)
        sq(B[3], B[2])
        mf(2, 0)
        cmul(Rr[3], X[3])
        mf(2, 1)
        a("s_nop 1")
        mf(3, 0)
        mf(3, 1)
    stamp(a, 2)
    a("v_lshlrev_b32 v3, 4, v12")
    a("s_lshl_b32 s27, s21, 7")
    a("v_add_u32 v7, s27, v12")
    a("v_lshrrev_b32 v8, 2, v7")
    a("v_and_b32 v9, 3, v7")
    a("s_movk_i32 s40, 80")
    a("v_mul_lo_u32 v8, v8, s40")
    a("v_lshl_add_u32 v8, v9, 4, v8")
    a("s_add_u32 s27, s25, %d" % (33280 + 32*80))
    a("v_add_u32 v8, s27, v8")
    a("s_waitcnt vmcnt(0)")
    a("ds_write_b128 v8, v[200:203]")
    a("ds_write_b128 v8, v[204:207] offset:%d" % (16*80))
    a("s_nop 7")
    a("v_and_b32 v5, 15, v12")
    a("v_lshlrev_b32 v5, 2, v5")
    a("v_lshl_add_u32 v5, v4, 8, v5")
    a("s_lshl_b32 s40, s21, 12")
    a("s_add_u32 s40, s40, s25")
    a("v_add_u32 v5, s40, v5")
    for w in range(4):
        for r in range(4):
            a(f"ds_write_b32 v5, v{40+4*w+r} offset:{TO+1024*w+64*r}")
    a("s_waitcnt lgkmcnt(0)")
    a("s_barrier")
    a("v_and_b32 v1, 127, v0")
    a("v_lshlrev_b32 v3, 4, v1")
    a("v_sub_u32 v3, 2047, v3")
    a("v_mov_b32 v4, 0")
    for thr in (256, 512, 1024):
        a(f"v_cmp_le_u32 vcc, {thr}, v3")
        a("s_nop 1")
        a("v_addc_co_u32 v4, vcc, 0, v4, vcc")
    a("v_lshlrev_b32 v5, v4, 1")
    a("v_lshrrev_b32 v5, 1, v5")
    a("v_cmp_ne_u32 vcc, 0, v4")
    a("s_nop 1")
    a("v_cndmask_b32 v6, 0, 1, vcc")
    a("v_sub_u32 v5, v5, v6")
    a("v_lshlrev_b32 v7, 7, v6")
    a("v_lshlrev_b32 v8, 8, v4")
    a("v_sub_u32 v8, v8, v7")
    a("v_lshlrev_b32 v8, 2, v8")
    a("v_add_u32 v8, s25, v8")
    for e in range(16):
        a(f"v_subrev_u32 v9, {e}, v3")
        a("v_lshrrev_b32 v10, v4, v9")
        a("v_and_b32 v10, v10, v6")
        a("v_add3_u32 v10, v10, v9, v5")
        a("v_lshrrev_b32 v10, v4, v10")
        a("v_lshl_add_u32 v10, v10, 2, v8")
        a(f"ds_read_b32 v{24+e}, v10 offset:{TO}")
        a(f"ds_read_b32 v{40+e}, v10 offset:{TO+4096}")
    a("s_waitcnt lgkmcnt(0)")
    for e in range(16):
        a(f"v_add_f32 v{24+e}, v{24+e}, v{40+e}")
    for e in range(8):
        a(f"v_cvt_pk_bf16_f32 v{56+e}, v{24+2*e}, v{25+2*e}")
    a("v_lshlrev_b32 v1, 5, v1")
    a("v_add_u32 v1, s25, v1")
    a("ds_write_b128 v1, v[56:59]")
    a("ds_write_b128 v1, v[60:63] offset:16")
    a("s_waitcnt lgkmcnt(0)")
    a("s_barrier")
    a("v_and_b32 v1, 127, v0")
    a("v_lshlrev_b32 v1, 4, v1")
    a("v_add_u32 v1, s25, v1")
    for cc in range(2):
        d = 24 + 8*cc
        a(f"ds_read_b128 v[{d}:{d+3}], v1 offset:{2048*cc}")
        a(f"ds_read_b128 v[{d+4}:{d+7}], v1 offset:{2048*cc+16}")
    a("v_cmp_gt_u32 vcc, 16, v12")
    a("s_and_saveexec_b64 s[58:59], vcc")
    a("ds_write_b128 v124, v[120:123] offset:16640")
    a("s_mov_b64 exec, s[58:59]")
    a("s_waitcnt lgkmcnt(1)")
    for cc in range(2):
        d = 24 + 8*cc
        for sh in range(1, 8):
            o = 56 + 4*((cc*7 + sh) % 8)
            b = sh >> 1
            for i in range(4):
                if sh & 1:
                    a(f"v_alignbit_b32 v{o+i}, v{d+b+i+1}, v{d+b+i}, 16")
                else:
                    a(f"v_mov_b32 v{o+i}, v{d+b+i}")
            a(f"ds_write_b128 v1, v[{o}:{o+3}] offset:{4160*sh + 2048*cc}")
    a("s_waitcnt lgkmcnt(0)")
    a("s_barrier")
    a("v_and_b32 v14, 31, v12")
    a("v_lshrrev_b32 v15, 5, v12")
    a("v_and_b32 v16, 7, v14")
    a("v_sub_u32 v16, 7, v16")
    a("s_movk_i32 s40, 4160")
    a("v_mul_lo_u32 v16, v16, s40")
    a("v_lshrrev_b32 v17, 3, v14")
    a("v_lshlrev_b32 v17, 4, v17")
    a("v_sub_u32 v16, v16, v17")
    a("v_lshl_add_u32 v16, v15, 4, v16")
    a("s_lshl_b32 s27, s21, 5")
    a("s_add_u32 s27, s27, s25")
    a("v_add_u32 v16, s27, v16")
    a("s_movk_i32 s40, 80")
    a("v_mul_lo_u32 v17, v14, s40")
    a("v_lshl_add_u32 v17, v15, 4, v17")
    a("s_add_u32 s27, s27, 33280")
    a("v_add_u32 v17, s27, v17")
    for r in range(32):
        a(f"v_mov_b32 v{64+r}, 0")
    a("v_lshlrev_b32 v3, 4, v12")
    stamp(a, 3)
    def crd(k):
        f = 20 + 12*(k % 3)
        a(f"ds_read_b128 v[{f}:{f+3}], v16 offset:{4080 - 64*k}")
        a(f"ds_read_b128 v[{f+4}:{f+7}], v17 offset:{(64-k)*80}")
        if k < 32:
            a(f"ds_read_b128 v[{f+8}:{f+11}], v17 offset:{(32-k)*80}")
    def cn(k): return 0 if k > 63 else (3 if k < 32 else 2)
    crd(0); crd(1)
    for k in range(64):
        f = 20 + 12*(k % 3)
        if k + 2 < 64: crd(k + 2)
        a(f"s_waitcnt lgkmcnt({cn(k+1) + cn(k+2)})")
        a(f"v_mfma_f32_32x32x16_bf16 v[80:95], v[{f}:{f+3}], v[{f+4}:{f+7}], v[80:95]")
        if k < 32:
            a(f"v_mfma_f32_32x32x16_bf16 v[64:79], v[{f}:{f+3}], v[{f+8}:{f+11}], v[64:79]")
    a("s_nop 15")
    a("s_nop 3")
    stamp(a, 4)
    a("s_barrier")
    a("s_lshl_b32 s27, s21, 12")
    a("s_add_u32 s27, s27, s25")
    a("v_add_u32 v4, s27, v3")
    a("s_cmp_eq_u32 s21, 0")
    a("s_cbranch_scc0 L_cx1")
    for j in range(4):
        a(f"ds_write_b128 v4, v[{80+4*j}:{83+4*j}] offset:{1024*j}")
    a("s_branch L_cx2")
    a.label("L_cx1")
    for j in range(4):
        a(f"ds_write_b128 v4, v[{64+4*j}:{67+4*j}] offset:{1024*j}")
    for r in range(16):
        a(f"v_mov_b32 v{64+r}, v{80+r}")
    a.label("L_cx2")
    a("s_waitcnt lgkmcnt(0)")
    a("s_barrier")
    a("s_xor_b32 s27, s21, 1")
    a("s_lshl_b32 s27, s27, 12")
    a("s_add_u32 s27, s27, s25")
    a("v_add_u32 v4, s27, v3")
    for j in range(4):
        a(f"ds_read_b128 v[{80+4*j}:{83+4*j}], v4 offset:{1024*j}")
    a("s_movk_i32 s40, 80")
    a("v_mul_lo_u32 v5, v14, s40")
    a("v_lshl_add_u32 v5, v15, 3, v5")
    a("s_mul_i32 s27, s21, 2560")
    a("s_add_u32 s27, s27, s25")
    a("s_add_u32 s27, s27, %d" % (33280 + 32*80))
    a("v_add_u32 v5, s27, v5")
    for g in range(4):
        a(f"ds_read_b64 v[{96+2*g}:{97+2*g}], v5 offset:{16*g}")
    a("v_lshlrev_b32 v6, 6, v14")
    a("v_lshl_add_u32 v6, v15, 3, v6")
    a("s_lshl_b32 s27, s22, 12")
    a("s_lshl_b32 s28, s21, 11")
    a("s_add_u32 s27, s27, s28")
    a("v_add_u32 v6, s27, v6")
    a("s_waitcnt lgkmcnt(0)")
    for g in range(4):
        a(f"v_lshlrev_b32 v24, 16, v{96+2*g}")
        a(f"v_and_b32 v25, 0xffff0000, v{96+2*g}")
        a(f"v_lshlrev_b32 v26, 16, v{97+2*g}")
        a(f"v_and_b32 v27, 0xffff0000, v{97+2*g}")
        for r in range(4):
            x = 64 + 4*g + r
            a(f"v_add_f32 v{x}, v{x}, v{80+4*g+r}")
            bf16r(a, x, x)
            a(f"v_mul_f32 v{24+r}, s24, v{24+r}")
            bf16r(a, 24+r, 24+r)
            a(f"v_add_f32 v{x}, v{x}, v{24+r}")
        a(f"v_cvt_pk_bf16_f32 v30, v{64+4*g}, v{65+4*g}")
        a(f"v_cvt_pk_bf16_f32 v31, v{66+4*g}, v{67+4*g}")
        a(f"buffer_store_dwordx2 v[30:31], v6, s[16:19], 0 offen offset:{16*g}")
        a("s_nop 1")
    stamp(a, 5)
    stamp_out(a, 6, CONVWG)
    a("s_endpgm")

def gen_k3(a):
    K = "fin_kernel"
    a(f".globl {K}\n.p2align 8\n.type {K},@function")
    a.label(K)
    if "fin" in SKIP: a("s_endpgm")
    a("s_cmp_ge_u32 s2, 256")
    a("s_cbranch_scc1 L_end_fin")
    a("s_load_dwordx2 s[4:5], s[0:1], %d" % KA_WS)
    a("s_load_dwordx2 s[6:7], s[0:1], %d" % KA_B2)
    a("s_load_dwordx2 s[28:29], s[0:1], %d" % KA_U)
    a("s_load_dwordx2 s[30:31], s[0:1], %d" % KA_OUT)
    stamp(a, 0)
    a("s_and_b32 s21, s2, 7")
    a("s_lshr_b32 s40, s2, 3")
    a("s_and_b32 s20, s40, 7")
    a("s_lshr_b32 s40, s40, 3")
    a("s_lshl_b32 s40, s40, 3")
    a("s_add_u32 s21, s21, s40")
    a("s_waitcnt lgkmcnt(0)")
    srd(a, 8, 4, 1835008, WS_W2T)
    srd(a, 12, 4, 7340032, WS_H)
    srd(a, 16, 4, 0x200000, WS_YAT)
    srd(a, 24, 6, 1024)
    srd(a, 32, 28, 0x200000)
    srd(a, 36, 30, 0x200000)
    a("s_mul_i32 s22, s20, %d" % (64*3584))
    a("s_mul_i32 s23, s21, %d" % (64*3584))
    def hook2(a):
        a("s_lshr_b32 s40, s3, 1")
        a("s_and_b32 s41, s3, 1")
        a("s_lshl_b32 s42, s20, 6")
        a("s_lshl_b32 s40, s40, 5")
        a("s_add_u32 s42, s42, s40")
        a("v_lshl_add_u32 v36, v15, 2, s42")
        a("v_lshlrev_b32 v37, 1, v36")
        a("s_lshl_b32 s43, s21, 6")
        a("s_lshl_b32 s41, s41, 5")
        a("s_add_u32 s43, s43, s41")
        a("v_add_u32 v38, s43, v14")
        a("v_lshl_add_u32 v39, v38, 10, v37")
        a("v_lshlrev_b32 v40, 12, v36")
        a("v_lshl_add_u32 v40, v38, 1, v40")
        for g in range(4):
            a(f"buffer_load_dwordx2 v[{192+2*g}:{193+2*g}], v37, s[24:27], 0 offen offset:{16*g}")
            a(f"buffer_load_dwordx2 v[{200+2*g}:{201+2*g}], v39, s[32:35], 0 offen offset:{16*g}")
        for g in range(4):
            for r in range(4):
                a(f"s_mov_b32 s44, {(8*g+r)*4096}")
                a(f"buffer_load_ushort v{208+4*g+r}, v40, s[16:19], s44 offen")
    gemm_dma(a, 64, 64, 14, 256, 4, 8, 12, 3584, 3584, 22, 23, True, 64, hook=hook2, npre=24)
    stamp(a, 3)
    a("s_barrier")
    a("v_readfirstlane_b32 s3, v13")
    a("v_lshlrev_b32 v3, 4, v12")
    for qd in range(4):
        lab = a.newlabel("L_rq")
        a(f"s_cmp_eq_u32 s3, {qd}")
        a(f"s_cbranch_scc1 {lab}")
        a(f"s_sub_u32 s40, s3, {qd+1}")
        a("s_and_b32 s40, s40, 3")
        a("s_lshl_b32 s40, s40, 12")
        a(f"s_add_u32 s40, s40, {qd*12288}")
        a("v_add_u32 v4, s40, v3")
        for j in range(4):
            a(f"ds_write_b128 v4, v[{64+16*qd+4*j}:{67+16*qd+4*j}] offset:{1024*j}")
        a.label(lab)
    a("s_waitcnt lgkmcnt(0)")
    a("s_barrier")
    for qd in range(4):
        lab = a.newlabel("L_mq")
        a(f"s_cmp_lg_u32 s3, {qd}")
        a(f"s_cbranch_scc1 {lab}")
        for r in range(16):
            a(f"v_mov_b32 v{48+r}, v{64+16*qd+r}")
        a.label(lab)
    a("s_mul_i32 s40, s3, 12288")
    a("v_add_u32 v4, s40, v3")
    for sl in range(3):
        for j in range(4):
            a(f"ds_read_b128 v[{64+16*sl+4*j}:{67+16*sl+4*j}], v4 offset:{4096*sl+1024*j}")
    a("s_waitcnt vmcnt(0) lgkmcnt(0)")
    for g in range(4):
        for half in range(2):
            a(f"v_lshlrev_b32 v{26+2*half}, 16, v{192+2*g+half}")
            a(f"v_and_b32 v{27+2*half}, 0xffff0000, v{192+2*g+half}")
            a(f"v_lshlrev_b32 v{30+2*half}, 16, v{200+2*g+half}")
            a(f"v_and_b32 v{31+2*half}, 0xffff0000, v{200+2*g+half}")
        for r in range(4):
            x = 48 + 4*g + r
            a(f"v_add_f32 v{x}, v{x}, v{64+4*g+r}")
            a(f"v_add_f32 v{x}, v{x}, v{80+4*g+r}")
            a(f"v_add_f32 v{x}, v{x}, v{96+4*g+r}")
            bf16r(a, x, x)
            a(f"v_add_f32 v{x}, v{x}, v{26+r}")
            bf16r(a, x, x)
            a(f"v_lshlrev_b32 v34, 16, v{208+4*g+r}")
            a(f"v_add_f32 v34, v34, v{30+r}")
            bf16r(a, 34, 34)
            a(f"v_add_f32 v{x}, v{x}, v34")
        a(f"v_cvt_pk_bf16_f32 v42, v{48+4*g}, v{49+4*g}")
        a(f"v_cvt_pk_bf16_f32 v43, v{50+4*g}, v{51+4*g}")
        a(f"buffer_store_dwordx2 v[42:43], v39, s[36:39], 0 offen offset:{16*g}")
        a("s_nop 1")
    stamp(a, 4)
    stamp_out(a, 5, 100)
    a.label("L_end_fin")
    a("s_endpgm")

def kd(name, vgpr, sgpr=102, accum=None):
    accum = accum or ((vgpr + 3) // 4 * 4)
    return f""".amdhsa_kernel {name}
  .amdhsa_next_free_vgpr {vgpr}
  .amdhsa_next_free_sgpr {sgpr}
  .amdhsa_accum_offset {accum}
  .amdhsa_group_segment_fixed_size 0
  .amdhsa_kernarg_size 120
  .amdhsa_user_sgpr_count 2
  .amdhsa_user_sgpr_kernarg_segment_ptr 1
  .amdhsa_system_sgpr_workgroup_id_x 1
.end_amdhsa_kernel
"""

def main():
    a = Asm()
    hdr = "; generated by dev/gen.py (own generator)\n"
    hdr += "; @launch kernel=prep_kernel grid=(368,1,1) block=(256,1,1) lds=16384\n"
    hdr += "; @launch kernel=mid_kernel grid=(512,1,1) block=(256,1,1) lds=81920\n"
    hdr += "; @launch kernel=fin_kernel grid=(256,1,1) block=(256,1,1) lds=131072\n"
    hdr += '.amdgcn_target "amdgcn-amd-amdhsa--gfx950"\n.text\n'
    gen_prep(a)
    gen_k2(a)
    gen_k3(a)
    txt = hdr + a.text() + '.section .rodata,"a"\n.p2align 6\n' + kd("prep_kernel", 96) + kd("mid_kernel", 256) + kd("fin_kernel", 256)
    open(os.environ.get("OUTS", f"cdna_kernels/{NAME}.s"), "w").write(txt)

import os
STAMPS = bool(os.environ.get('STAMPS'))
SKIP = os.environ.get('SKIP', '').split(',')
CONVWG = int(os.environ.get('CONVWG', '-1'))
G1WG = int(os.environ.get('G1WG', '-1'))
main()
```
